```python
import torch

def _softmax(x, axis=-1):
    return torch.softmax(x, dim=axis)
def _gelu(x):
    return torch.nn.functional.gelu(x, approximate="tanh")
def _silu(x):
    return torch.nn.functional.silu(x)
def _sigmoid(x):
    return torch.sigmoid(x)
def _layernorm(x, axis=-1, eps=1e-5):
    m = x.mean(dim=axis, keepdim=True)
    v = x.var(dim=axis, keepdim=True, unbiased=False)
    return (x - m) / torch.sqrt(v + eps)
def _scatter_add(tgt, idx, src, axis=0):
    return tgt.clone().index_add_(axis, idx, src)
def _segment_sum(src, seg, n):
    out = torch.zeros((n,) + src.shape[1:], dtype=src.dtype)
    return out.index_add_(0, seg, src)
def _pad(x, pw):
    flat = tuple(v for pair in reversed(pw) for v in pair)
    return torch.nn.functional.pad(x, flat)

kernel_name = 'standalone__normalfloat_lut_codebook_lookup__prompt'

def setup_inputs():

    _w = (lambda a: (lambda t: t.to(torch.bfloat16) if t.is_floating_point() else t)(torch.as_tensor(a)))
    B, S, D, F = 1, 2048, 1024, 3584
    G = 32 if 32 > 0 else D
    D = (D // G) * G
    ng = D // G
    nf4 = torch.tensor([
        -1.0, -0.6961928009986877, -0.5250730514526367, -0.39491748809814453,
        -0.28444138169288635, -0.18477343022823334, -0.09105003625154495, 0.0,
        0.07958029955625534, 0.16093020141124725, 0.24611230194568634, 0.33791524171829224,
        0.44070982933044434, 0.5626170039176941, 0.7229568362236023, 1.0
    ], dtype=float)
    qw = torch.randint(0, 16, (D, F)).to(torch.int64)
    absmax = (torch.abs((lambda *s: torch.randn(*s, dtype=torch.bfloat16) * 0.05)(ng, F)) + 0.01).to(float)
    return {
        "x": _w((lambda *s: torch.randn(*s, dtype=torch.bfloat16) * 0.05)(B, S, D)),
        "qw": _w(qw),
        "codebook": _w(nf4),
        "absmax": _w(absmax),
    }

def reference(x, qw, codebook, absmax):
    B, S, D = x.shape
    ng, F = absmax.shape
    G = D // ng
    w_nf = codebook[qw]
    s = (lambda x, n, axis: torch.repeat_interleave(x, n, dim=axis))(absmax, G, axis=0)
    w = (lambda x, dt: x.to(dt))(w_nf * s, x.dtype)
    return torch.einsum("bsd,df->bsf", x, w)
```

```python
import sys
NAME = "standalone__normalfloat_lut_codebook_lookup__prompt_kernel"
M, K, N = 2048, 1024, 3584
NR = int(sys.argv[2]) if len(sys.argv) > 2 else 6
NB = 3
TILE = 7168
RND = 2 * TILE
TBL = NB * RND
LDS = TBL + 256
L = []
def e(s): L.append("    " + s)
def lab(s): L.append(s + ":")
def c(s): L.append("    ; " + s)

hdr = f"""; Kernarg layout for this problem (56 bytes, ptrs only, base s[0:1]):
; @launch grid=(256,1,1) block=(512,1,1) lds={LDS}
.amdgcn_target "amdgcn-amd-amdhsa--gfx950"
.text
.globl {NAME}
.p2align 8
.type {NAME},@function
{NAME}:
"""
SX, SQ, SA, SO, SC = 16, 20, 24, 28, 32
S_NT, S_MT, S_W = 36, 37, 38
S_RND = 39
S_X0 = 40
S_T0, S_T1 = 44, 45
S_QOFF, S_AOFF, S_LB = 46, 47, 48
S_XSZ = 49

e("s_cmp_ge_u32 s2, 256")
e("s_cbranch_scc1 L_end")
e("s_load_dwordx8 s[4:11], s[0:1], 0")
e("s_load_dwordx2 s[12:13], s[0:1], 32")
e("s_and_b32 s14, s2, 7")
e("s_lshr_b32 s15, s2, 3")
e(f"s_and_b32 s{S_NT}, s15, 3")
e("s_lshl_b32 s14, s14, 2")
e(f"s_add_u32 s{S_NT}, s{S_NT}, s14")
e(f"s_lshr_b32 s{S_MT}, s15, 2")
e("v_lshrrev_b32 v1, 6, v0")
e("v_and_b32 v0, 63, v0")
e(f"v_readfirstlane_b32 s{S_W}, v1")
e(f"s_mov_b32 s{S_RND}, 0")
e(f"s_cmp_ge_u32 s{S_W}, 4")
e("s_cbranch_scc1 L_prod")

ACC = 8
WF = ACC + 112
XF = WF + 28
V_XOFF, V_RE, V_RO, V_O1, V_O2 = 1, 2, 3, 4, 5
assert XF + 96 <= 256
def acc(i, j): b = ACC + (i * 7 + j) * 4; return f"v[{b}:{b+3}]"
def wf(j): b = WF + j * 4; return f"v[{b}:{b+3}]"
def xf(slot, s, i): b = XF + ((slot * 2 + s) * 4 + i) * 4; return f"v[{b}:{b+3}]"

c("consumer setup")
e("v_and_b32 v6, 15, v0")
e("v_lshrrev_b32 v7, 4, v0")
e(f"v_lshlrev_b32 v{V_XOFF}, 11, v6")
e(f"v_lshl_add_u32 v{V_XOFF}, v7, 4, v{V_XOFF}")
e(f"s_lshl_b32 s{S_T0}, s{S_MT}, 8")
e(f"s_lshl_b32 s{S_T1}, s{S_W}, 6")
e(f"s_add_u32 s{S_T0}, s{S_T0}, s{S_T1}")
e(f"s_lshl_b32 s{S_X0}, s{S_T0}, 11")
for i in range(1, 4):
    e(f"s_add_u32 s{S_X0+i}, s{S_X0}, {i*16*2048}")
e(f"s_mov_b32 s{S_XSZ}, {M*K*2}")
e("s_waitcnt lgkmcnt(0)")
e(f"s_mov_b32 s{SX}, s4")
e(f"s_and_b32 s{SX+1}, s5, 0xffff")
e(f"s_mov_b32 s{SX+2}, {M*K*2}")
e(f"s_mov_b32 s{SX+3}, 0x20000")
def xloads(slot, off):
    for i in range(4):
        for s in range(2):
            e(f"buffer_load_dwordx4 {xf(slot, s, i)}, v{V_XOFF}, s[{SX}:{SX+3}], s{S_X0+i} offen offset:{off + 64*s}")
xloads(0, 0)
xloads(1, 128)
e(f"s_mov_b32 s{SO}, s12")
e(f"s_and_b32 s{SO+1}, s13, 0xffff")
e(f"s_mov_b32 s{SO+2}, {M*N*2}")
e(f"s_mov_b32 s{SO+3}, 0x20000")
e("v_and_b32 v8, 3, v0")
e("v_bfe_u32 v9, v0, 2, 2")
e("v_lshlrev_b32 v10, 8, v7")
e("v_lshl_add_u32 v10, v9, 4, v10")
e(f"v_lshl_add_u32 v{V_RE}, v8, 6, v10")
e(f"v_xor_b32 v{V_RO}, 64, v{V_RE}")
e(f"s_movk_i32 s{S_T1}, 7168")
e(f"v_mul_lo_u32 v{V_O1}, v6, s{S_T1}")
e(f"v_lshl_add_u32 v{V_O2}, v7, 3, v{V_O1}")
e(f"v_lshl_add_u32 v{V_O1}, v7, 4, v{V_O1}")
for r in range(112):
    e(f"v_mov_b32 v{ACC+r}, 0")
e("s_barrier")
def wread(j, off):
    e(f"ds_read_b128 {wf(j)}, v{V_RO if j & 1 else V_RE} offset:{off + 1024*j}")
for j in range(7):
    wread(j, 0)
lab("L_cloop")
for R in range(3):
    c(f"round slot {R}")
    e(f"s_cmp_lt_u32 s{S_RND}, 14")
    e(f"s_cselect_b32 s{SX+2}, s{S_XSZ}, 0")
    e("s_waitcnt vmcnt(8)")
    for s in range(2):
        nxt = R * RND + TILE if s == 0 else ((R + 1) % 3) * RND
        for j in range(7):
            e("s_waitcnt lgkmcnt(6)")
            for i in range(4):
                e(f"v_mfma_f32_16x16x32_bf16 {acc(i,j)}, {wf(j)}, {xf(R,s,i)}, {acc(i,j)}")
                if s == 0 and j < 2:
                    if i % 2 == 0:
                        ii = j * 2 + i // 2
                        for ss in range(2):
                            e(f"buffer_load_dwordx4 {xf((R+2)%3, ss, ii)}, v{V_XOFF}, s[{SX}:{SX+3}], s{S_X0+ii} offen offset:{(R+2)*128 + 64*ss}")
            wread(j, nxt)
        if s == 0:
            e("s_barrier")
    e(f"s_add_u32 s{S_RND}, s{S_RND}, 1")
    if R == 0:
        e(f"s_cmp_eq_u32 s{S_RND}, 16")
        e("s_cbranch_scc1 L_epi")
for i in range(4):
    e(f"s_add_u32 s{S_X0+i}, s{S_X0+i}, 384")
e("s_branch L_cloop")

lab("L_epi")
e(f"s_mul_i32 s{S_X0}, s{S_T0}, 7168")
e(f"s_mul_i32 s{S_T1}, s{S_NT}, 224")
e(f"s_add_u32 s{S_X0}, s{S_X0}, s{S_T1}")
for i in range(1, 4):
    e(f"s_add_u32 s{S_X0+i}, s{S_X0}, {i*16*7168}")
e("s_nop 7")
e("s_waitcnt lgkmcnt(0) vmcnt(0)")
P = XF
k = 0
for i in range(4):
    for u in range(3):
        b = P + k * 4; k += 1
        a0 = ACC + (i * 7 + 2 * u) * 4
        a1 = a0 + 4
        e(f"v_cvt_pk_bf16_f32 v{b}, v{a0}, v{a0+1}")
        e(f"v_cvt_pk_bf16_f32 v{b+1}, v{a0+2}, v{a0+3}")
        e(f"v_cvt_pk_bf16_f32 v{b+2}, v{a1}, v{a1+1}")
        e(f"v_cvt_pk_bf16_f32 v{b+3}, v{a1+2}, v{a1+3}")
        e(f"buffer_store_dwordx4 v[{b}:{b+3}], v{V_O1}, s[{SO}:{SO+3}], s{S_X0+i} offen offset:{64*u}")
    b = P + k * 4; k += 1
    a0 = ACC + (i * 7 + 6) * 4
    e(f"v_cvt_pk_bf16_f32 v{b}, v{a0}, v{a0+1}")
    e(f"v_cvt_pk_bf16_f32 v{b+1}, v{a0+2}, v{a0+3}")
    e(f"buffer_store_dwordx2 v[{b}:{b+1}], v{V_O2}, s[{SO}:{SO+3}], s{S_X0+i} offen offset:192")
e("s_endpgm")

lab("L_prod")
VQO = 2
V_AO = 10
V_WA, V_WB = 11, 12
V_WA2, V_WB2 = 13, 14
V_S = 16
V_D = 20
RAW = 36
SCL = RAW + NR * 32
assert SCL + NR * 2 <= 256
def q(slot, r, t): return RAW + slot * 32 + r * 4 + t
e(f"s_sub_u32 s{S_W}, s{S_W}, 4")
e("s_mov_b32 exec_lo, 0x0fffffff")
e("s_mov_b32 exec_hi, 0x0fffffff")
e("v_and_b32 v1, 31, v0")
e("v_lshrrev_b32 v15, 5, v0")
e(f"s_mov_b32 s{S_T0}, {8*14336}")
e(f"v_mul_lo_u32 v{VQO}, v15, s{S_T0}")
e(f"v_lshl_add_u32 v{VQO}, v1, 4, v{VQO}")
for r in range(1, 8):
    e(f"v_add_u32 v{VQO+r}, {r*14336}, v{VQO}")
e(f"v_lshlrev_b32 v{V_AO}, 3, v1")
e(f"s_mul_i32 s{S_QOFF}, s{S_W}, {16*14336}")
e(f"s_mul_i32 s{S_T0}, s{S_NT}, 448")
e(f"s_add_u32 s{S_QOFF}, s{S_QOFF}, s{S_T0}")
e(f"s_lshr_b32 s{S_T1}, s{S_W}, 1")
e(f"s_mul_i32 s{S_AOFF}, s{S_T1}, 7168")
e(f"s_mul_i32 s{S_T0}, s{S_NT}, 224")
e(f"s_add_u32 s{S_AOFF}, s{S_AOFF}, s{S_T0}")
e("v_lshlrev_b32 v16, 1, v0")
e("s_waitcnt lgkmcnt(0)")
for (srd, p, sz) in ((SC, 8, 32), (SQ, 6, K*N*4), (SA, 10, 32*N*2)):
    e(f"s_mov_b32 s{srd}, s{p}")
    e(f"s_and_b32 s{srd+1}, s{p+1}, 0xffff")
    e(f"s_mov_b32 s{srd+2}, {sz}")
    e(f"s_mov_b32 s{srd+3}, 0x20000")
e(f"buffer_load_ushort v17, v16, s[{SC}:{SC+3}], 0 offen")
def qloads(slot):
    e(f"buffer_load_dwordx2 v[{SCL+2*slot}:{SCL+2*slot+1}], v{V_AO}, s[{SA}:{SA+3}], s{S_AOFF} offen")
    for r in range(8):
        b = q(slot, r, 0)
        e(f"buffer_load_dwordx4 v[{b}:{b+3}], v{VQO+r}, s[{SQ}:{SQ+3}], s{S_QOFF} offen")
    e(f"s_add_u32 s{S_QOFF}, s{S_QOFF}, {64*14336}")
    e(f"s_add_u32 s{S_AOFF}, s{S_AOFF}, {2*7168}")
for sl in range(NR):
    qloads(sl)
e("v_lshrrev_b32 v18, 3, v1")
e("v_lshlrev_b32 v18, 1, v18")
e("v_and_b32 v19, 1, v1")
e("v_bfe_u32 v20, v1, 1, 2")
e("v_and_b32 v21, 3, v1")
e("v_cmp_le_u32 vcc, 24, v1")
e("s_nop 1")
e("v_cndmask_b32 v19, v19, 0, vcc")
e("v_cndmask_b32 v20, v20, v21, vcc")
e("v_add_u32 v18, v18, v19")
e("v_lshlrev_b32 v18, 10, v18")
e("v_lshl_add_u32 v18, v20, 4, v18")
e("v_lshl_add_u32 v18, v15, 8, v18")
e(f"s_and_b32 s{S_T0}, s{S_W}, 1")
e(f"s_lshl_b32 s{S_T0}, s{S_T0}, 9")
e(f"s_mul_i32 s{S_T1}, s{S_T1}, {TILE}")
e(f"s_add_u32 s{S_T0}, s{S_T0}, s{S_T1}")
e(f"v_add_u32 v18, s{S_T0}, v18")
e(f"v_lshl_add_u32 v{V_WA}, v19, 6, v18")
e(f"v_xor_b32 v{V_WB}, 64, v{V_WA}")
e(f"s_mov_b32 s{S_LB}, 0")
e(f"s_waitcnt vmcnt({9*NR})")
e("v_lshlrev_b32 v17, 16, v17")
e("v_lshlrev_b32 v16, 2, v0")
e(f"ds_write_b32 v16, v17 offset:{TBL}")
e("s_waitcnt lgkmcnt(0)")
lab("L_ploop")
for sl in range(NR):
    c(f"producer slot {sl}")
    e(f"s_waitcnt vmcnt({9*(NR-1)})")
    s0 = SCL + 2 * sl
    e(f"v_lshlrev_b32 v{V_S}, 16, v{s0}")
    e(f"v_and_b32 v{V_S+1}, 0xffff0000, v{s0}")
    e(f"v_lshlrev_b32 v{V_S+2}, 16, v{s0+1}")
    e(f"v_and_b32 v{V_S+3}, 0xffff0000, v{s0+1}")
    e(f"v_add_u32 v{V_WA2}, s{S_LB}, v{V_WA}")
    e(f"v_add_u32 v{V_WB2}, s{S_LB}, v{V_WB}")
    def look(sp):
        for r in (2*sp, 2*sp+1):
            for t in range(4):
                e(f"v_lshlrev_b32 v{q(sl,r,t)}, 2, v{q(sl,r,t)}")
            for t in range(4):
                e(f"ds_read_b32 v{q(sl,r,t)}, v{q(sl,r,t)} offset:{TBL}")
    def fin(sp):
        for r in (2*sp, 2*sp+1):
            for t in range(4):
                e(f"v_mul_f32 v{q(sl,r,t)}, v{V_S+t}, v{q(sl,r,t)}")
        for t in range(4):
            e(f"v_cvt_pk_bf16_f32 v{V_D+4*t+sp}, v{q(sl,2*sp,t)}, v{q(sl,2*sp+1,t)}")
    look(0)
    for sp in range(4):
        if sp < 3:
            look(sp + 1)
            e("s_waitcnt lgkmcnt(8)")
        else:
            e("s_waitcnt lgkmcnt(0)")
        fin(sp)
    for t in range(4):
        e(f"ds_write_b128 v{V_WB2 if t & 1 else V_WA2}, v[{V_D+4*t}:{V_D+4*t+3}] offset:{128 if t >= 2 else 0}")
    qloads(sl)
    e(f"s_add_u32 s{S_LB}, s{S_LB}, {RND}")
    e(f"s_cmp_eq_u32 s{S_LB}, {NB*RND}")
    e(f"s_cselect_b32 s{S_LB}, 0, s{S_LB}")
    e(f"s_add_u32 s{S_RND}, s{S_RND}, 1")
    e("s_waitcnt lgkmcnt(0)")
    e("s_barrier")
    e(f"s_cmp_eq_u32 s{S_RND}, 16")
    e("s_cbranch_scc1 L_end")
e("s_branch L_ploop")
lab("L_end")
e("s_endpgm")

tail = f""".section .rodata,"a"
.p2align 6
.amdhsa_kernel {NAME}
  .amdhsa_next_free_vgpr 256
  .amdhsa_next_free_sgpr 64
  .amdhsa_accum_offset 256
  .amdhsa_group_segment_fixed_size 0
  .amdhsa_kernarg_size 56
  .amdhsa_user_sgpr_count 2
  .amdhsa_user_sgpr_kernarg_segment_ptr 1
  .amdhsa_system_sgpr_workgroup_id_x 1
  .amdhsa_float_denorm_mode_32 3
.end_amdhsa_kernel
"""
open(sys.argv[1], "w").write(hdr + "\n".join(L) + "\n" + tail)
```

```python
import sys
NAME = "standalone__normalfloat_lut_codebook_lookup__prompt_kernel"
M, K, N = 2048, 1024, 3584
OPT = dict(a.split("=") for a in sys.argv[2:])
STAMP = int(OPT.get("stamp", 0))
NOX = int(OPT.get("nox", 0)); NOQ = int(OPT.get("noq", 0))
CPRIO = int(OPT.get("cprio", 0))
NOLOOK = int(OPT.get("nolook", 0)); NOWR = int(OPT.get("nowr", 0)); NOVALU = int(OPT.get("novalu", 0)); NOVM = int(OPT.get("novm", 0))
PPRIO = int(OPT.get("pprio", 0))
STFLAG = OPT.get("st", "")
STFLAG = STFLAG.replace("_", " ")
TBL = 0
SCL = 256
WR = SCL + 8192
XR = WR + 32768
LDS = XR + 3 * 32768
QROW = N * 4
OROW = N * 2
L = []
def e(s): L.append("    " + s)
def lab(s): L.append(s + ":")
def c(s): L.append("    ; " + s)
VST = 167 if not STAMP else 167

hdr = f"""; Kernarg layout for this problem (56 bytes, ptrs only, base s[0:1]):
; @launch grid=(224,1,1) block=(768,1,1) lds={LDS}
.amdgcn_target "amdgcn-amd-amdhsa--gfx950"
.text
.globl {NAME}
.p2align 8
.type {NAME},@function
{NAME}:
"""
SX, SQ, SA, SO, SC = 16, 20, 24, 28, 32
S_NT, S_MT, S_W = 36, 37, 38
S_RND = 39
S_T0, S_T1, S_T2 = 40, 41, 42
S_QOFF, S_XOFF, S_XM0, S_XSL = 43, 44, 45, 46
S_WSL = 47
S_XSZ = 48
S_O = 49

SV = 7
def stamp(idx, v, dyn=None):
    if not STAMP: return
    if dyn is not None:
        e(f"s_add_u32 s62, s{dyn}, {idx}")
    e("s_memtime s[60:61]")
    e("s_waitcnt lgkmcnt(0)")
    if dyn is not None:
        e("s_mov_b32 s59, m0")
        e("s_mov_b32 m0, s62")
        e(f"v_writelane_b32 v{v}, s60, m0")
        e("s_mov_b32 m0, s59")
    else:
        e(f"v_writelane_b32 v{v}, s60, {idx}")
def stamp_out(v, vt):
    if not STAMP: return
    e("s_load_dwordx2 s[64:65], s[0:1], 48")
    e("s_mul_i32 s66, s2, 12")
    e("s_add_u32 s66, s66, s63")
    e("s_lshl_b32 s66, s66, 8")
    e(f"v_lshlrev_b32 v{vt}, 2, v0")
    e(f"v_add_u32 v{vt}, s66, v{vt}")
    e("s_waitcnt lgkmcnt(0)")
    e(f"global_store_dword v{vt}, v{v}, s[64:65]")

e("s_cmp_ge_u32 s2, 224")
e("s_cbranch_scc1 L_end")
if STAMP:
    e("s_memtime s[56:57]")
    e("s_memrealtime s[54:55]")
e("s_load_dwordx8 s[4:11], s[0:1], 0")
e("s_load_dwordx2 s[12:13], s[0:1], 32")
e("s_lshr_b32 s15, s2, 3")
e("s_and_b32 s14, s2, 1")
e("s_lshl_b32 s14, s14, 2")
e(f"s_and_b32 s{S_MT}, s15, 3")
e(f"s_add_u32 s{S_MT}, s{S_MT}, s14")
e("s_bfe_u32 s14, s2, 0x20001")
e("s_mul_i32 s14, s14, 7")
e(f"s_lshr_b32 s{S_NT}, s15, 2")
e(f"s_add_u32 s{S_NT}, s{S_NT}, s14")
e("v_lshrrev_b32 v1, 6, v0")
e("v_and_b32 v0, 63, v0")
e(f"v_readfirstlane_b32 s{S_W}, v1")
if STAMP: e(f"s_mov_b32 s63, s{S_W}")
e(f"s_cmp_ge_u32 s{S_W}, 4")
e("s_cbranch_scc1 L_prod")

ACC = 8
XF = ACC + 128
WF = XF + 16
V_XB, V_XA, V_WB, V_XL, V_WL, V_O = 1, 2, 3, 4, 5, 6
def acc(i, j): b = ACC + (i * 2 + j) * 16; return f"v[{b}:{b+15}]"
def xf(i): b = XF + 4 * i; return f"v[{b}:{b+3}]"
def wf(bu, j): b = WF + 8 * bu + 4 * j; return f"v[{b}:{b+3}]"
c("consumer setup")
if CPRIO: e(f"s_setprio {CPRIO}")
if STAMP:
    e(f"v_mov_b32 v{SV}, 0")
    e("s_waitcnt lgkmcnt(0)")
    e(f"v_writelane_b32 v{SV}, s56, 0")
e(f"s_lshr_b32 s{S_T0}, s{S_W}, 1")
e(f"s_and_b32 s{S_T1}, s{S_W}, 1")
e("v_and_b32 v8, 31, v0")
e("v_lshrrev_b32 v9, 5, v0")
e("v_bfe_u32 v10, v8, 1, 3")
e("v_xor_b32 v10, v10, v9")
e("v_lshlrev_b32 v10, 4, v10")
e(f"v_lshl_add_u32 v{V_XL}, v8, 7, v10")
e(f"s_lshl_b32 s{S_T2}, s{S_T0}, 14")
e(f"s_add_u32 s{S_T2}, s{S_T2}, {XR}")
e(f"v_add_u32 v{V_XL}, s{S_T2}, v{V_XL}")
e("v_and_b32 v10, 1, v8")
e("v_lshrrev_b32 v11, 1, v8")
e("v_lshlrev_b32 v12, 1, v10")
e("v_xor_b32 v11, v11, v12")
e("v_lshl_add_u32 v11, v10, 4, v11")
e("v_lshlrev_b32 v11, 4, v11")
e(f"v_lshl_add_u32 v{V_WL}, v9, 9, v11")
e(f"s_lshl_b32 s{S_T2}, s{S_T1}, 11")
e(f"s_add_u32 s{S_T2}, s{S_T2}, {WR}")
e(f"v_add_u32 v{V_WL}, s{S_T2}, v{V_WL}")
e(f"s_movk_i32 s{S_T2}, {4*OROW}")
e(f"v_mul_lo_u32 v{V_O}, v9, s{S_T2}")
e(f"v_lshl_add_u32 v{V_O}, v8, 2, v{V_O}")
e(f"s_lshl_b32 s{S_O}, s{S_MT}, 1")
e(f"s_add_u32 s{S_O}, s{S_O}, s{S_T0}")
e(f"s_mul_i32 s{S_O}, s{S_O}, {128*OROW}")
e(f"s_lshl_b32 s{S_T2}, s{S_NT}, 1")
e(f"s_add_u32 s{S_T2}, s{S_T2}, s{S_T1}")
e(f"s_lshl_b32 s{S_T2}, s{S_T2}, 7")
e(f"s_add_u32 s{S_O}, s{S_O}, s{S_T2}")
e(f"v_mov_b32 v{V_XB}, v{V_XL}")
e(f"v_mov_b32 v{V_XA}, v{V_XL}")
e(f"v_mov_b32 v{V_WB}, v{V_WL}")
for r in range(128):
    e(f"v_mov_b32 v{ACC+r}, 0")
e(f"s_mov_b32 s{S_RND}, 0")
e(f"s_mov_b32 s{S_XSL}, 0")
e(f"s_mov_b32 s{S_WSL}, 0")
e("s_waitcnt lgkmcnt(0)")
e(f"s_mov_b32 s{SO}, s12")
e(f"s_and_b32 s{SO+1}, s13, 0xffff")
e(f"s_mov_b32 s{SO+2}, {M*N*2}")
e(f"s_mov_b32 s{SO+3}, 0x20000")
stamp(1, SV)
e("s_barrier")
stamp(2, SV)
def rW(bu, j, ks): e(f"ds_read_b128 {wf(bu, j)}, v{V_WB} offset:{ks*4096 + j*1024}")
def rX(i): e(f"ds_read_b128 {xf(i)}, v{V_XA} offset:{i*4096}")
def mf(i, j, bu): e(f"v_mfma_f32_32x32x16_bf16 {acc(i,j)}, {xf(i)}, {wf(bu,j)}, {acc(i,j)}")
rW(0, 0, 0); rX(0); rW(0, 1, 0); rX(1); rX(2); rX(3)
lab("L_cloop")
for ks in range(4):
    bu = ks & 1; nb = bu ^ 1
    c(f"k16 step {ks}")
    if ks < 3:
        e(f"v_xor_b32 v{V_XA}, {32*(ks+1)}, v{V_XB}")
        e("s_waitcnt lgkmcnt(4)")
        mf(0, 0, bu)
        rW(nb, 0, ks + 1)
        e("s_waitcnt lgkmcnt(4)")
        mf(0, 1, bu)
        rX(0); rW(nb, 1, ks + 1)
        e("s_waitcnt lgkmcnt(5)")
        mf(1, 0, bu); mf(1, 1, bu)
        rX(1)
        if ks == 1:
            e(f"s_add_u32 s{S_XSL}, s{S_XSL}, 32768")
            e(f"s_cmp_eq_u32 s{S_XSL}, {3*32768}")
            e(f"s_cselect_b32 s{S_XSL}, 0, s{S_XSL}")
            e(f"s_xor_b32 s{S_WSL}, s{S_WSL}, 16384")
        e("s_waitcnt lgkmcnt(5)")
        mf(2, 0, bu); mf(2, 1, bu)
        rX(2)
        e("s_waitcnt lgkmcnt(5)")
        mf(3, 0, bu); mf(3, 1, bu)
        rX(3)
    else:
        e(f"v_add_u32 v{V_XB}, s{S_XSL}, v{V_XL}")
        e(f"v_add_u32 v{V_XA}, s{S_XSL}, v{V_XL}")
        e(f"v_add_u32 v{V_WB}, s{S_WSL}, v{V_WL}")
        e("s_waitcnt lgkmcnt(4)")
        mf(0, 0, bu)
        e("s_waitcnt lgkmcnt(3)")
        mf(0, 1, bu)
        e("s_waitcnt lgkmcnt(2)")
        mf(1, 0, bu); mf(1, 1, bu)
        e(f"s_add_u32 s{S_RND}, s{S_RND}, 1")
        e("s_waitcnt lgkmcnt(0)")
        stamp(3, SV, dyn=S_RND)
        e("s_barrier")
        stamp(23, SV, dyn=S_RND)
        rW(nb, 0, 0); rX(0); rW(nb, 1, 0); rX(1)
        mf(2, 0, bu); mf(2, 1, bu)
        rX(2)
        e(f"s_cmp_lg_u32 s{S_RND}, 16")
        mf(3, 0, bu); mf(3, 1, bu)
        rX(3)
        e("s_cbranch_scc1 L_cloop")
c("epilogue")
e("s_nop 7")
stamp(20, SV)
e("s_waitcnt lgkmcnt(0)")
for t in range(1, 4):
    e(f"v_add_u32 v{XF+t}, {t*OROW}, v{V_O}")
e(f"v_mov_b32 v{XF}, v{V_O}")
for i in range(4):
    for rq in range(4):
        for t in range(4):
            r = rq * 4 + t
            a0 = ACC + (i * 2) * 16 + r; a1 = a0 + 16
            e(f"v_cvt_pk_bf16_f32 v{a0}, v{a0}, v{a1}")
        for t in range(4):
            r = rq * 4 + t
            a0 = ACC + (i * 2) * 16 + r
            e(f"buffer_store_dword v{a0}, v{XF+t}, s[{SO}:{SO+3}], s{S_O} offen {STFLAG}")
        e(f"s_add_u32 s{S_O}, s{S_O}, {8*OROW}")
stamp(21, SV)
if STAMP: e("s_waitcnt vmcnt(0)")
stamp(22, SV)
if STAMP:
    e("s_memrealtime s[60:61]")
    e("s_waitcnt lgkmcnt(0)")
    e(f"v_writelane_b32 v{SV}, s60, 61")
    e(f"v_writelane_b32 v{SV}, s54, 60")
stamp_out(SV, 1)
e("s_endpgm")

lab("L_prod")
VQO = 1
VXO = 5
V_W0, V_W1 = 9, 10
V_SA = 11
V_SR = 12
V_S = 14
V_D = 20
RAW = 36
PSV = 100
T = 104
def q(st, r, t): return RAW + st * 32 + r * 4 + t
if STAMP:
    e(f"v_mov_b32 v{PSV}, 0")
    e("s_waitcnt lgkmcnt(0)")
    e(f"v_writelane_b32 v{PSV}, s56, 0")
if PPRIO: e(f"s_setprio {PPRIO}")
e(f"s_sub_u32 s{S_W}, s{S_W}, 4")
e(f"s_and_b32 s{S_T0}, s{S_W}, 3")
e(f"s_lshr_b32 s{S_T1}, s{S_W}, 2")
e(f"v_and_b32 v{T}, 31, v0")
e(f"v_lshrrev_b32 v{T+1}, 5, v0")
e(f"s_mov_b32 s{S_T2}, {8*QROW}")
e(f"v_mul_lo_u32 v{VQO}, v{T+1}, s{S_T2}")
e(f"v_lshl_add_u32 v{VQO}, v{T}, 4, v{VQO}")
for r in range(1, 4):
    e(f"v_add_u32 v{VQO+r}, {r*QROW}, v{VQO}")
e(f"s_mul_i32 s{S_QOFF}, s{S_W}, {16*QROW}")
e(f"s_lshl_b32 s{S_T2}, s{S_NT}, 9")
e(f"s_add_u32 s{S_QOFF}, s{S_QOFF}, s{S_T2}")
e(f"v_lshrrev_b32 v{T+2}, 4, v0")
e(f"s_movk_i32 s{S_T2}, {4*OROW}")
e(f"v_mul_lo_u32 v{T+3}, v{T+2}, s{S_T2}")
e(f"v_and_b32 v{T+4}, 15, v0")
e(f"v_lshl_add_u32 v{T+3}, v{T+4}, 4, v{T+3}")
e(f"v_add_u32 v{T+4}, {16*OROW - 1024}, v{T+3}")
e(f"s_lshr_b32 s50, s{S_W}, 1")
e(f"s_mul_i32 s51, s50, {OROW}")
e(f"s_lshl_b32 s{S_T2}, s{S_NT}, 8")
e(f"s_add_u32 s51, s51, s{S_T2}")
e(f"s_lshl_b32 s50, s50, 11")
e(f"s_add_u32 s50, s50, {SCL}")
e(f"v_lshlrev_b32 v{T+5}, 1, v0")
e("s_mov_b32 m0, s50")
e("s_waitcnt lgkmcnt(0)")
for (srd, p, sz) in ((SC, 8, 32), (SA, 10, 32*N*2), (SQ, 6, 0 if NOQ else K*N*4), (SX, 4, 0 if NOX else M*K*2)):
    e(f"s_mov_b32 s{srd}, s{p}")
    e(f"s_and_b32 s{srd+1}, s{p+1}, 0xffff")
    e(f"s_mov_b32 s{srd+2}, {sz}")
    e(f"s_mov_b32 s{srd+3}, 0x20000")
stamp(1, PSV)
e(f"buffer_load_ushort v{T+6}, v{T+5}, s[{SC}:{SC+3}], 0 offen")
e(f"buffer_load_dwordx4 v{T+3}, s[{SA}:{SA+3}], s51 offen lds")
e(f"buffer_load_dwordx4 v{T+4}, s[{SA}:{SA+3}], s51 offen offset:1024 lds")
def qload_half(st, half):
    for r in range(4):
        b = q(st, 4 * half + r, 0)
        e(f"buffer_load_dwordx4 v[{b}:{b+3}], v{VQO+r}, s[{SQ}:{SQ+3}], s{S_QOFF} offen")
    e(f"s_add_u32 s{S_QOFF}, s{S_QOFF}, {4*QROW if half == 0 else 124*QROW}")
qload_half(0, 0); qload_half(0, 1)
e(f"v_lshrrev_b32 v{T+7}, 3, v0")
e(f"v_lshlrev_b32 v{T+7}, 11, v{T+7}")
e(f"v_and_b32 v{T+8}, 7, v0")
e(f"v_xor_b32 v{T+8}, v{T+8}, v{T+2}")
e(f"v_lshl_add_u32 v{VXO}, v{T+8}, 4, v{T+7}")
e(f"v_xor_b32 v{VXO+1}, 64, v{VXO}")
e(f"v_add_u32 v{VXO+2}, {2*15360}, v{VXO}")
e(f"v_add_u32 v{VXO+3}, {3*15360}, v{VXO+1}")
e(f"v_add_u32 v{VXO+1}, {1*15360}, v{VXO+1}")
e(f"s_lshl_b32 s{S_XOFF}, s{S_MT}, 3")
e(f"s_add_u32 s{S_XOFF}, s{S_XOFF}, s{S_W}")
e(f"s_lshl_b32 s{S_XOFF}, s{S_XOFF}, 16")
e(f"s_lshl_b32 s{S_XM0}, s{S_W}, 12")
e(f"s_add_u32 s{S_XM0}, s{S_XM0}, {XR}")
e(f"s_mov_b32 s{S_XSL}, 0")
e(f"s_mov_b32 s{S_XSZ}, {0 if NOX else M*K*2}")
def xdma():
    e(f"s_add_u32 m0, s{S_XM0}, s{S_XSL}")
    e(f"s_add_u32 s{S_XSL}, s{S_XSL}, 32768")
    for d in range(4):
        e(f"buffer_load_dwordx4 v{VXO+d}, s[{SX}:{SX+3}], s{S_XOFF} offen offset:{1024*d} lds")
    e(f"s_cmp_eq_u32 s{S_XSL}, {3*32768}")
    e(f"s_cselect_b32 s{S_XSL}, 0, s{S_XSL}")
    e(f"s_add_u32 s{S_XOFF}, s{S_XOFF}, 128")
xdma()
qload_half(1, 0); qload_half(1, 1)
e(f"v_and_b32 v{T+7}, 15, v{T}")
e(f"v_lshrrev_b32 v{T+8}, 4, v{T}")
e(f"v_lshlrev_b32 v{T+8}, 11, v{T+8}")
e(f"v_lshl_add_u32 v{T+8}, v{T+1}, 9, v{T+8}")
e(f"v_lshl_add_u32 v{T+8}, v{T+7}, 4, v{T+8}")
e(f"s_lshl_b32 s{S_T2}, s{S_W}, 12")
e(f"s_add_u32 s{S_T2}, s{S_T2}, {WR}")
e(f"v_add_u32 v{V_W0}, s{S_T2}, v{T+8}")
e(f"v_xor_b32 v{V_W1}, 32, v{V_W0}")
e(f"v_add_u32 v{V_W1}, 256, v{V_W1}")
e(f"v_lshlrev_b32 v{V_SA}, 3, v{T}")
e(f"v_add_u32 v{V_SA}, s50, v{V_SA}")
e(f"s_mov_b32 s{S_RND}, s{S_T1}")
e("s_waitcnt vmcnt(22)")
e(f"v_lshlrev_b32 v{T+6}, 16, v{T+6}")
e(f"v_lshlrev_b32 v{T+5}, 2, v0")
e(f"ds_write_b32 v{T+5}, v{T+6} offset:{TBL}")
stamp(2, PSV)
e(f"s_cmp_eq_u32 s{S_T1}, 0")
e("s_cbranch_scc1 L_pentryA")
lab("L_ploop")
for ph in range(4):
    st, half = ph >> 1, ph & 1
    c(f"producer phase set {st} half {half}")
    e(f"s_cmp_lt_u32 s{S_RND}, 16")
    e(f"s_cselect_b32 s{SX+2}, s{S_XSZ}, 0")
    if not NOVM: xdma()
    if ph == 0: lab("L_pentryA")
    e("s_waitcnt vmcnt(16)")
    stamp(24, PSV, dyn=S_RND)
    if half == 0:
        e(f"ds_read_b64 v[{V_SR}:{V_SR+1}], v{V_SA} offset:{256*st}")
    def look(sp):
        for r in (2*sp, 2*sp+1):
            for t in range(4):
                if not NOVALU: e(f"v_lshlrev_b32 v{q(st,r,t)}, 2, v{q(st,r,t)}")
        for r in (2*sp, 2*sp+1):
            for t in range(4):
                if not NOLOOK: e(f"ds_read_b32 v{q(st,r,t)}, v{q(st,r,t) if not NOVALU else T+5} offset:{TBL}")
    def fin(sp):
        if NOVALU: return
        for r in (2*sp, 2*sp+1):
            for t in range(4):
                e(f"v_mul_f32 v{q(st,r,t)}, v{V_S+t}, v{q(st,r,t)}")
        for t in range(4):
            e(f"v_cvt_pk_bf16_f32 v{V_D+4*t+sp}, v{q(st,2*sp,t)}, v{q(st,2*sp+1,t)}")
    sp0 = 2 * half
    look(sp0)
    if half == 0:
        e("s_waitcnt lgkmcnt(8)")
        e(f"v_lshlrev_b32 v{V_S}, 16, v{V_SR}")
        e(f"v_and_b32 v{V_S+1}, 0xffff0000, v{V_SR}")
        e(f"v_lshlrev_b32 v{V_S+2}, 16, v{V_SR+1}")
        e(f"v_and_b32 v{V_S+3}, 0xffff0000, v{V_SR+1}")
    look(sp0 + 1)
    e("s_waitcnt lgkmcnt(8)")
    fin(sp0)
    e("s_waitcnt lgkmcnt(0)")
    fin(sp0 + 1)
    if half == 1 and not NOWR:
        for t in range(4):
            e(f"ds_write_b128 v{V_W1 if t >> 1 else V_W0}, v[{V_D+4*t}:{V_D+4*t+3}] offset:{1024*(t&1)}")
    e(f"s_cmp_lt_u32 s{S_QOFF}, {K*QROW}")
    e(f"s_cselect_b32 s{SQ+2}, s{SQ+2}, 0")
    if not NOVM: qload_half(st, half)
    if ph == 3:
        e(f"v_add_u32 v{V_SA}, 512, v{V_SA}")
    e(f"s_add_u32 s{S_RND}, s{S_RND}, 1")
    if ph == 0:
        e(f"s_cmp_eq_u32 s{S_RND}, 1")
        e(f"s_cbranch_scc1 L_pskip")
    e("s_waitcnt vmcnt(12) lgkmcnt(0)")
    stamp(3, PSV, dyn=S_RND)
    e("s_barrier")
    if ph == 0: lab("L_pskip")
e(f"s_cmp_lt_u32 s{S_RND}, 16")
e("s_cbranch_scc1 L_ploop")
e(f"s_cmp_eq_u32 s{S_RND}, 17")
e("s_cbranch_scc1 L_pend")
e("s_waitcnt vmcnt(0)")
e("s_barrier")
lab("L_pend")
stamp_out(PSV, 1)
lab("L_end")
e("s_endpgm")

tail = f""".section .rodata,"a"
.p2align 6
.amdhsa_kernel {NAME}
  .amdhsa_next_free_vgpr 168
  .amdhsa_next_free_sgpr 80
  .amdhsa_accum_offset 168
  .amdhsa_group_segment_fixed_size 0
  .amdhsa_kernarg_size 56
  .amdhsa_user_sgpr_count 2
  .amdhsa_user_sgpr_kernarg_segment_ptr 1
  .amdhsa_system_sgpr_workgroup_id_x 1
  .amdhsa_float_denorm_mode_32 3
.end_amdhsa_kernel
"""
open(sys.argv[1], "w").write(hdr + "\n".join(L) + "\n" + tail)
print("LDS", LDS)
```

```python
import sys
NAME = "standalone__normalfloat_lut_codebook_lookup__prompt_kernel"
M, K, N = 2048, 1024, 3584
OPT = dict(a.split("=") for a in sys.argv[2:])
STAMP = int(OPT.get("stamp", 0))
NOX = int(OPT.get("nox", 0)); NOQ = int(OPT.get("noq", 0))
CPRIO = int(OPT.get("cprio", 0))
NOLOOK = int(OPT.get("nolook", 0)); NOWR = int(OPT.get("nowr", 0)); NOVALU = int(OPT.get("novalu", 0)); NOVM = int(OPT.get("novm", 0))
PPRIO = int(OPT.get("pprio", 0))
DBG = int(OPT.get("dbg", 0))
STFLAG = OPT.get("st", "")
STFLAG = STFLAG.replace("_", " ")
TBL = 0
SCL = 256
WR = SCL + 8192
XR = WR + 32768
LDS = XR + 3 * 32768
QROW = N * 4
OROW = N * 2
L = []
def e(s): L.append("    " + s)
def lab(s): L.append(s + ":")
def c(s): L.append("    ; " + s)
VST = 167 if not STAMP else 167

hdr = f"""; Kernarg layout for this problem (56 bytes, ptrs only, base s[0:1]):
; @launch grid=(224,1,1) block=(768,1,1) lds={LDS}
.amdgcn_target "amdgcn-amd-amdhsa--gfx950"
.text
.globl {NAME}
.p2align 8
.type {NAME},@function
{NAME}:
"""
SX, SQ, SA, SO, SC = 16, 20, 24, 28, 32
S_NT, S_MT, S_W = 36, 37, 38
S_RND = 39
S_T0, S_T1, S_T2 = 40, 41, 42
S_QOFF, S_XOFF, S_XM0, S_XSL = 43, 44, 45, 46
S_WSL = 47
S_XSZ = 48
S_O = 49

SV = 7
def stamp(idx, v, dyn=None):
    if not STAMP: return
    if dyn is not None:
        e(f"s_add_u32 s62, s{dyn}, {idx}")
    e("s_memtime s[60:61]")
    e("s_waitcnt lgkmcnt(0)")
    if dyn is not None:
        e("s_mov_b32 s59, m0")
        e("s_mov_b32 m0, s62")
        e(f"v_writelane_b32 v{v}, s60, m0")
        e("s_mov_b32 m0, s59")
    else:
        e(f"v_writelane_b32 v{v}, s60, {idx}")
def stamp_out(v, vt):
    if not STAMP: return
    e("s_load_dwordx2 s[64:65], s[0:1], 48")
    e("s_mul_i32 s66, s2, 12")
    e("s_add_u32 s66, s66, s63")
    e("s_lshl_b32 s66, s66, 8")
    e(f"v_lshlrev_b32 v{vt}, 2, v0")
    e(f"v_add_u32 v{vt}, s66, v{vt}")
    e("s_waitcnt lgkmcnt(0)")
    e(f"global_store_dword v{vt}, v{v}, s[64:65]")

e("s_cmp_ge_u32 s2, 224")
e("s_cbranch_scc1 L_end")
if STAMP:
    e("s_memtime s[56:57]")
    e("s_memrealtime s[54:55]")
if DBG:
    e("s_memtime s[56:57]")
    e("s_memrealtime s[54:55]")
e("s_load_dwordx8 s[4:11], s[0:1], 0")
e("s_load_dwordx2 s[12:13], s[0:1], 32")
e("s_lshr_b32 s15, s2, 3")
e("s_and_b32 s14, s2, 1")
e("s_lshl_b32 s14, s14, 2")
e(f"s_and_b32 s{S_MT}, s15, 3")
e(f"s_add_u32 s{S_MT}, s{S_MT}, s14")
e("s_bfe_u32 s14, s2, 0x20001")
e("s_mul_i32 s14, s14, 7")
e(f"s_lshr_b32 s{S_NT}, s15, 2")
e(f"s_add_u32 s{S_NT}, s{S_NT}, s14")
e("v_lshrrev_b32 v1, 6, v0")
e("v_and_b32 v0, 63, v0")
e(f"v_readfirstlane_b32 s{S_W}, v1")
if STAMP: e(f"s_mov_b32 s63, s{S_W}")
e(f"s_cmp_ge_u32 s{S_W}, 4")
e("s_cbranch_scc1 L_prod")

ACC = 8
XF = ACC + 128
WF = XF + 16
V_XB, V_XA, V_WB, V_XL, V_WL, V_O = 1, 2, 3, 4, 5, 6
def acc(i, j): b = ACC + (i * 2 + j) * 16; return f"v[{b}:{b+15}]"
def xf(i): b = XF + 4 * i; return f"v[{b}:{b+3}]"
def wf(bu, j): b = WF + 8 * bu + 4 * j; return f"v[{b}:{b+3}]"
c("consumer setup")
if CPRIO: e(f"s_setprio {CPRIO}")
if STAMP:
    e(f"v_mov_b32 v{SV}, 0")
    e("s_waitcnt lgkmcnt(0)")
    e(f"v_writelane_b32 v{SV}, s56, 0")
e(f"s_lshr_b32 s{S_T0}, s{S_W}, 1")
e(f"s_and_b32 s{S_T1}, s{S_W}, 1")
e("v_and_b32 v8, 31, v0")
e("v_lshrrev_b32 v9, 5, v0")
e("v_bfe_u32 v10, v8, 1, 3")
e("v_xor_b32 v10, v10, v9")
e("v_lshlrev_b32 v10, 4, v10")
e(f"v_lshl_add_u32 v{V_XL}, v8, 7, v10")
e(f"s_lshl_b32 s{S_T2}, s{S_T0}, 14")
e(f"s_add_u32 s{S_T2}, s{S_T2}, {XR}")
e(f"v_add_u32 v{V_XL}, s{S_T2}, v{V_XL}")
e("v_and_b32 v10, 1, v8")
e("v_lshrrev_b32 v11, 1, v8")
e("v_lshlrev_b32 v12, 1, v10")
e("v_xor_b32 v11, v11, v12")
e("v_lshl_add_u32 v11, v10, 4, v11")
e("v_lshlrev_b32 v11, 4, v11")
e(f"v_lshl_add_u32 v{V_WL}, v9, 9, v11")
e(f"s_lshl_b32 s{S_T2}, s{S_T1}, 11")
e(f"s_add_u32 s{S_T2}, s{S_T2}, {WR}")
e(f"v_add_u32 v{V_WL}, s{S_T2}, v{V_WL}")
e(f"s_movk_i32 s{S_T2}, {4*OROW}")
e(f"v_mul_lo_u32 v{V_O}, v9, s{S_T2}")
e(f"v_lshl_add_u32 v{V_O}, v8, 2, v{V_O}")
e(f"s_lshl_b32 s{S_O}, s{S_MT}, 1")
e(f"s_add_u32 s{S_O}, s{S_O}, s{S_T0}")
e(f"s_mul_i32 s{S_O}, s{S_O}, {128*OROW}")
e(f"s_lshl_b32 s{S_T2}, s{S_NT}, 1")
e(f"s_add_u32 s{S_T2}, s{S_T2}, s{S_T1}")
e(f"s_lshl_b32 s{S_T2}, s{S_T2}, 7")
e(f"s_add_u32 s{S_O}, s{S_O}, s{S_T2}")
e(f"v_mov_b32 v{V_XB}, v{V_XL}")
e(f"v_mov_b32 v{V_XA}, v{V_XL}")
e(f"v_mov_b32 v{V_WB}, v{V_WL}")
for r in range(128):
    e(f"v_mov_b32 v{ACC+r}, 0")
e(f"s_mov_b32 s{S_RND}, 0")
e(f"s_mov_b32 s{S_XSL}, 0")
e(f"s_mov_b32 s{S_WSL}, 0")
e("s_waitcnt lgkmcnt(0)")
e(f"s_mov_b32 s{SO}, s12")
e(f"s_and_b32 s{SO+1}, s13, 0xffff")
e(f"s_mov_b32 s{SO+2}, {M*N*2}")
e(f"s_mov_b32 s{SO+3}, 0x20000")
stamp(1, SV)
e("s_barrier")
stamp(2, SV)
if DBG: e("s_memtime s[68:69]")
def rW(bu, j, ks): e(f"ds_read_b128 {wf(bu, j)}, v{V_WB} offset:{ks*4096 + j*1024}")
def rX(i): e(f"ds_read_b128 {xf(i)}, v{V_XA} offset:{i*4096}")
def mf(i, j, bu): e(f"v_mfma_f32_32x32x16_bf16 {acc(i,j)}, {xf(i)}, {wf(bu,j)}, {acc(i,j)}")
rW(0, 0, 0); rX(0); rW(0, 1, 0); rX(1); rX(2); rX(3)
lab("L_cloop")
for ks in range(4):
    bu = ks & 1; nb = bu ^ 1
    c(f"k16 step {ks}")
    if ks < 3:
        e(f"v_xor_b32 v{V_XA}, {32*(ks+1)}, v{V_XB}")
        e("s_waitcnt lgkmcnt(4)")
        mf(0, 0, bu)
        rW(nb, 0, ks + 1)
        e("s_waitcnt lgkmcnt(4)")
        mf(0, 1, bu)
        rX(0); rW(nb, 1, ks + 1)
        e("s_waitcnt lgkmcnt(5)")
        mf(1, 0, bu); mf(1, 1, bu)
        rX(1)
        if ks == 1:
            e(f"s_add_u32 s{S_XSL}, s{S_XSL}, 32768")
            e(f"s_cmp_eq_u32 s{S_XSL}, {3*32768}")
            e(f"s_cselect_b32 s{S_XSL}, 0, s{S_XSL}")
            e(f"s_xor_b32 s{S_WSL}, s{S_WSL}, 16384")
        e("s_waitcnt lgkmcnt(5)")
        mf(2, 0, bu); mf(2, 1, bu)
        rX(2)
        e("s_waitcnt lgkmcnt(5)")
        mf(3, 0, bu); mf(3, 1, bu)
        rX(3)
    else:
        e(f"v_add_u32 v{V_XB}, s{S_XSL}, v{V_XL}")
        e(f"v_add_u32 v{V_XA}, s{S_XSL}, v{V_XL}")
        e(f"v_add_u32 v{V_WB}, s{S_WSL}, v{V_WL}")
        e("s_waitcnt lgkmcnt(4)")
        mf(0, 0, bu)
        e("s_waitcnt lgkmcnt(3)")
        mf(0, 1, bu)
        e("s_waitcnt lgkmcnt(2)")
        mf(1, 0, bu); mf(1, 1, bu)
        e(f"s_add_u32 s{S_RND}, s{S_RND}, 1")
        e("s_waitcnt lgkmcnt(0)")
        stamp(3, SV, dyn=S_RND)
        e("s_barrier")
        stamp(23, SV, dyn=S_RND)
        rW(nb, 0, 0); rX(0); rW(nb, 1, 0); rX(1)
        mf(2, 0, bu); mf(2, 1, bu)
        rX(2)
        e(f"s_cmp_lg_u32 s{S_RND}, 16")
        mf(3, 0, bu); mf(3, 1, bu)
        rX(3)
        e("s_cbranch_scc1 L_cloop")
c("epilogue")
e("s_nop 7")
stamp(20, SV)
if DBG: e("s_memtime s[70:71]")
e("s_waitcnt lgkmcnt(0)")
for t in range(1, 4):
    e(f"v_add_u32 v{XF+t}, {t*OROW}, v{V_O}")
e(f"v_mov_b32 v{XF}, v{V_O}")
for i in range(4):
    for rq in range(4):
        for t in range(4):
            r = rq * 4 + t
            a0 = ACC + (i * 2) * 16 + r; a1 = a0 + 16
            e(f"v_cvt_pk_bf16_f32 v{a0}, v{a0}, v{a1}")
        for t in range(4):
            r = rq * 4 + t
            a0 = ACC + (i * 2) * 16 + r
            e(f"buffer_store_dword v{a0}, v{XF+t}, s[{SO}:{SO+3}], s{S_O} offen {STFLAG}")
        e(f"s_add_u32 s{S_O}, s{S_O}, {8*OROW}")
stamp(21, SV)
if STAMP: e("s_waitcnt vmcnt(0)")
stamp(22, SV)
if STAMP:
    e("s_memrealtime s[60:61]")
    e("s_waitcnt lgkmcnt(0)")
    e(f"v_writelane_b32 v{SV}, s60, 61")
    e(f"v_writelane_b32 v{SV}, s54, 60")
stamp_out(SV, 1)
if DBG:
    e("s_waitcnt vmcnt(0)")
    e("s_memtime s[72:73]")
    e("s_memrealtime s[74:75]")
    e("s_load_dwordx2 s[64:65], s[0:1], 40")
    e("s_waitcnt lgkmcnt(0)")
    e("s_not_b32 s66, s54")
    e("v_mov_b32 v1, 0")
    e("v_mov_b32 v2, s66")
    e("v_mov_b32 v3, s74")
    e("s_sub_u32 s68, s68, s56")
    e("s_sub_u32 s70, s70, s56")
    e("s_sub_u32 s72, s72, s56")
    e("s_sub_u32 s74, s74, s54")
    e("v_mov_b32 v4, s68")
    e("v_mov_b32 v5, s70")
    e("v_mov_b32 v6, s72")
    e("v_mov_b32 v7, s74")
    e("v_mov_b32 v8, s54")
    e("s_mov_b64 exec, 1")
    e("global_atomic_umax v1, v2, s[64:65]")
    e("global_atomic_umax v1, v3, s[64:65] offset:4")
    e("global_atomic_umax v1, v4, s[64:65] offset:8")
    e("global_atomic_umax v1, v5, s[64:65] offset:12")
    e("global_atomic_umax v1, v6, s[64:65] offset:16")
    e("global_atomic_umax v1, v7, s[64:65] offset:20")
    e("global_atomic_umax v1, v8, s[64:65] offset:24")
    e("global_atomic_add v1, v4, s[64:65] offset:32")
    e("global_atomic_add v1, v5, s[64:65] offset:36")
    e("global_atomic_add v1, v6, s[64:65] offset:40")
    e("global_atomic_add v1, v7, s[64:65] offset:44")
e("s_endpgm")

lab("L_prod")
VQO = 1
VXO = 5
V_W0, V_W1 = 9, 10
V_SA = 11
V_SR = 12
V_S = 14
V_D = 20
RAW = 36
PSV = 100
T = 104
def q(st, r, t): return RAW + st * 32 + r * 4 + t
if STAMP:
    e(f"v_mov_b32 v{PSV}, 0")
    e("s_waitcnt lgkmcnt(0)")
    e(f"v_writelane_b32 v{PSV}, s56, 0")
if PPRIO: e(f"s_setprio {PPRIO}")
e(f"s_sub_u32 s{S_W}, s{S_W}, 4")
e(f"s_and_b32 s{S_T0}, s{S_W}, 3")
e(f"s_lshr_b32 s{S_T1}, s{S_W}, 2")
e(f"v_and_b32 v{T}, 31, v0")
e(f"v_lshrrev_b32 v{T+1}, 5, v0")
e(f"s_mov_b32 s{S_T2}, {8*QROW}")
e(f"v_mul_lo_u32 v{VQO}, v{T+1}, s{S_T2}")
e(f"v_lshl_add_u32 v{VQO}, v{T}, 4, v{VQO}")
for r in range(1, 4):
    e(f"v_add_u32 v{VQO+r}, {r*QROW}, v{VQO}")
e(f"s_mul_i32 s{S_QOFF}, s{S_W}, {16*QROW}")
e(f"s_lshl_b32 s{S_T2}, s{S_NT}, 9")
e(f"s_add_u32 s{S_QOFF}, s{S_QOFF}, s{S_T2}")
e(f"v_lshrrev_b32 v{T+2}, 4, v0")
e(f"s_movk_i32 s{S_T2}, {4*OROW}")
e(f"v_mul_lo_u32 v{T+3}, v{T+2}, s{S_T2}")
e(f"v_and_b32 v{T+4}, 15, v0")
e(f"v_lshl_add_u32 v{T+3}, v{T+4}, 4, v{T+3}")
e(f"v_add_u32 v{T+4}, {16*OROW - 1024}, v{T+3}")
e(f"s_lshr_b32 s50, s{S_W}, 1")
e(f"s_mul_i32 s51, s50, {OROW}")
e(f"s_lshl_b32 s{S_T2}, s{S_NT}, 8")
e(f"s_add_u32 s51, s51, s{S_T2}")
e(f"s_lshl_b32 s50, s50, 11")
e(f"s_add_u32 s50, s50, {SCL}")
e(f"v_lshlrev_b32 v{T+5}, 1, v0")
e("s_mov_b32 m0, s50")
e("s_waitcnt lgkmcnt(0)")
for (srd, p, sz) in ((SC, 8, 32), (SA, 10, 32*N*2), (SQ, 6, 0 if NOQ else K*N*4), (SX, 4, 0 if NOX else M*K*2)):
    e(f"s_mov_b32 s{srd}, s{p}")
    e(f"s_and_b32 s{srd+1}, s{p+1}, 0xffff")
    e(f"s_mov_b32 s{srd+2}, {sz}")
    e(f"s_mov_b32 s{srd+3}, 0x20000")
stamp(1, PSV)
e(f"buffer_load_ushort v{T+6}, v{T+5}, s[{SC}:{SC+3}], 0 offen")
e(f"buffer_load_dwordx4 v{T+3}, s[{SA}:{SA+3}], s51 offen lds")
e(f"buffer_load_dwordx4 v{T+4}, s[{SA}:{SA+3}], s51 offen offset:1024 lds")
def qload_half(st, half):
    for r in range(4):
        b = q(st, 4 * half + r, 0)
        e(f"buffer_load_dwordx4 v[{b}:{b+3}], v{VQO+r}, s[{SQ}:{SQ+3}], s{S_QOFF} offen")
    e(f"s_add_u32 s{S_QOFF}, s{S_QOFF}, {4*QROW if half == 0 else 124*QROW}")
qload_half(0, 0); qload_half(0, 1)
e(f"v_lshrrev_b32 v{T+7}, 3, v0")
e(f"v_lshlrev_b32 v{T+7}, 11, v{T+7}")
e(f"v_and_b32 v{T+8}, 7, v0")
e(f"v_xor_b32 v{T+8}, v{T+8}, v{T+2}")
e(f"v_lshl_add_u32 v{VXO}, v{T+8}, 4, v{T+7}")
e(f"v_xor_b32 v{VXO+1}, 64, v{VXO}")
e(f"v_add_u32 v{VXO+2}, {2*15360}, v{VXO}")
e(f"v_add_u32 v{VXO+3}, {3*15360}, v{VXO+1}")
e(f"v_add_u32 v{VXO+1}, {1*15360}, v{VXO+1}")
e(f"s_lshl_b32 s{S_XOFF}, s{S_MT}, 3")
e(f"s_add_u32 s{S_XOFF}, s{S_XOFF}, s{S_W}")
e(f"s_lshl_b32 s{S_XOFF}, s{S_XOFF}, 16")
e(f"s_lshl_b32 s{S_XM0}, s{S_W}, 12")
e(f"s_add_u32 s{S_XM0}, s{S_XM0}, {XR}")
e(f"s_mov_b32 s{S_XSL}, 0")
e(f"s_mov_b32 s{S_XSZ}, {0 if NOX else M*K*2}")
def xdma():
    e(f"s_add_u32 m0, s{S_XM0}, s{S_XSL}")
    e(f"s_add_u32 s{S_XSL}, s{S_XSL}, 32768")
    for d in range(4):
        e(f"buffer_load_dwordx4 v{VXO+d}, s[{SX}:{SX+3}], s{S_XOFF} offen offset:{1024*d} lds")
    e(f"s_cmp_eq_u32 s{S_XSL}, {3*32768}")
    e(f"s_cselect_b32 s{S_XSL}, 0, s{S_XSL}")
    e(f"s_add_u32 s{S_XOFF}, s{S_XOFF}, 128")
xdma()
qload_half(1, 0); qload_half(1, 1)
e(f"v_and_b32 v{T+7}, 15, v{T}")
e(f"v_lshrrev_b32 v{T+8}, 4, v{T}")
e(f"v_lshlrev_b32 v{T+8}, 11, v{T+8}")
e(f"v_lshl_add_u32 v{T+8}, v{T+1}, 9, v{T+8}")
e(f"v_lshl_add_u32 v{T+8}, v{T+7}, 4, v{T+8}")
e(f"s_lshl_b32 s{S_T2}, s{S_W}, 12")
e(f"s_add_u32 s{S_T2}, s{S_T2}, {WR}")
e(f"v_add_u32 v{V_W0}, s{S_T2}, v{T+8}")
e(f"v_xor_b32 v{V_W1}, 32, v{V_W0}")
e(f"v_add_u32 v{V_W1}, 256, v{V_W1}")
e(f"v_lshlrev_b32 v{V_SA}, 3, v{T}")
e(f"v_add_u32 v{V_SA}, s50, v{V_SA}")
e(f"s_mov_b32 s{S_RND}, s{S_T1}")
e("s_waitcnt vmcnt(22)")
e(f"v_lshlrev_b32 v{T+6}, 16, v{T+6}")
e(f"v_lshlrev_b32 v{T+5}, 2, v0")
e(f"ds_write_b32 v{T+5}, v{T+6} offset:{TBL}")
stamp(2, PSV)
e(f"s_cmp_eq_u32 s{S_T1}, 0")
e("s_cbranch_scc1 L_pentryA")
lab("L_ploop")
for ph in range(4):
    st, half = ph >> 1, ph & 1
    c(f"producer phase set {st} half {half}")
    e(f"s_cmp_lt_u32 s{S_RND}, 16")
    e(f"s_cselect_b32 s{SX+2}, s{S_XSZ}, 0")
    if not NOVM: xdma()
    if ph == 0: lab("L_pentryA")
    e("s_waitcnt vmcnt(16)")
    stamp(24, PSV, dyn=S_RND)
    if half == 0:
        e(f"ds_read_b64 v[{V_SR}:{V_SR+1}], v{V_SA} offset:{256*st}")
    def look(sp):
        for r in (2*sp, 2*sp+1):
            for t in range(4):
                if not NOVALU: e(f"v_lshlrev_b32 v{q(st,r,t)}, 2, v{q(st,r,t)}")
        for r in (2*sp, 2*sp+1):
            for t in range(4):
                if not NOLOOK: e(f"ds_read_b32 v{q(st,r,t)}, v{q(st,r,t) if not NOVALU else T+5} offset:{TBL}")
    def fin(sp):
        if NOVALU: return
        for r in (2*sp, 2*sp+1):
            for t in range(4):
                e(f"v_mul_f32 v{q(st,r,t)}, v{V_S+t}, v{q(st,r,t)}")
        for t in range(4):
            e(f"v_cvt_pk_bf16_f32 v{V_D+4*t+sp}, v{q(st,2*sp,t)}, v{q(st,2*sp+1,t)}")
    sp0 = 2 * half
    look(sp0)
    if half == 0:
        e("s_waitcnt lgkmcnt(8)")
        e(f"v_lshlrev_b32 v{V_S}, 16, v{V_SR}")
        e(f"v_and_b32 v{V_S+1}, 0xffff0000, v{V_SR}")
        e(f"v_lshlrev_b32 v{V_S+2}, 16, v{V_SR+1}")
        e(f"v_and_b32 v{V_S+3}, 0xffff0000, v{V_SR+1}")
    look(sp0 + 1)
    e("s_waitcnt lgkmcnt(8)")
    fin(sp0)
    e("s_waitcnt lgkmcnt(0)")
    fin(sp0 + 1)
    if half == 1 and not NOWR:
        for t in range(4):
            e(f"ds_write_b128 v{V_W1 if t >> 1 else V_W0}, v[{V_D+4*t}:{V_D+4*t+3}] offset:{1024*(t&1)}")
    e(f"s_cmp_lt_u32 s{S_QOFF}, {K*QROW}")
    e(f"s_cselect_b32 s{SQ+2}, s{SQ+2}, 0")
    if not NOVM: qload_half(st, half)
    if ph == 3:
        e(f"v_add_u32 v{V_SA}, 512, v{V_SA}")
    e(f"s_add_u32 s{S_RND}, s{S_RND}, 1")
    if ph == 0:
        e(f"s_cmp_eq_u32 s{S_RND}, 1")
        e(f"s_cbranch_scc1 L_pskip")
    e("s_waitcnt vmcnt(12) lgkmcnt(0)")
    stamp(3, PSV, dyn=S_RND)
    e("s_barrier")
    if ph == 0: lab("L_pskip")
e(f"s_cmp_lt_u32 s{S_RND}, 16")
e("s_cbranch_scc1 L_ploop")
e(f"s_cmp_eq_u32 s{S_RND}, 17")
e("s_cbranch_scc1 L_pend")
e("s_waitcnt vmcnt(0)")
e("s_barrier")
lab("L_pend")
stamp_out(PSV, 1)
lab("L_end")
e("s_endpgm")

tail = f""".section .rodata,"a"
.p2align 6
.amdhsa_kernel {NAME}
  .amdhsa_next_free_vgpr 168
  .amdhsa_next_free_sgpr 80
  .amdhsa_accum_offset 168
  .amdhsa_group_segment_fixed_size 0
  .amdhsa_kernarg_size 56
  .amdhsa_user_sgpr_count 2
  .amdhsa_user_sgpr_kernarg_segment_ptr 1
  .amdhsa_system_sgpr_workgroup_id_x 1
  .amdhsa_float_denorm_mode_32 3
.end_amdhsa_kernel
"""
open(sys.argv[1], "w").write(hdr + "\n".join(L) + "\n" + tail)
print("LDS", LDS)
```

```python
import sys
NAME = "standalone__normalfloat_lut_codebook_lookup__prompt_kernel"
M, K, N = 2048, 1024, 3584
OPT = dict(a.split("=") for a in sys.argv[2:])
STAMP = int(OPT.get("stamp", 0))
NOX = int(OPT.get("nox", 0)); NOQ = int(OPT.get("noq", 0))
CPRIO = int(OPT.get("cprio", 0)); DPRIO = int(OPT.get("dprio", 0))
NOLOOK = int(OPT.get("nolook", 0)); NOWR = int(OPT.get("nowr", 0)); NOVALU = int(OPT.get("novalu", 0))
STFLAG = OPT.get("st", "nt").replace("_", " ").replace("-", "")
NBURST = int(OPT.get("nburst", 2))
HELP = int(OPT.get("help", 1))
LAG = int(OPT.get("lag", 1))
RB = 1 + 2 * NBURST
QA = int(OPT.get("qa", 2))
WPRIO = int(OPT.get("wprio", 0))
TBL = 0
SCL = 256
WR = SCL + 8192
XR = WR + 32768
LDS = XR + 2 * 32768
QROW = N * 4
OROW = N * 2
L = []
def e(s): L.append("    " + s)
def lab(s): L.append(s + ":")
def c(s): L.append("    ; " + s)

hdr = f"""; Kernarg layout for this problem (56 bytes, ptrs only, base s[0:1]):
; @launch grid=(256,1,1) block=(768,1,1) lds={LDS}
.amdgcn_target "amdgcn-amd-amdhsa--gfx950"
.text
.globl {NAME}
.p2align 8
.type {NAME},@function
{NAME}:
"""
SX, SQ, SA, SO, SC = 16, 20, 24, 28, 32
S_NT, S_MT, S_W = 36, 37, 38
S_RND = 39
S_T0, S_T1, S_T2 = 40, 41, 42
S_QOFF, S_XOFF, S_XM0, S_XSL = 43, 44, 45, 46
S_WSL = 47
S_QOF2, S_XOF2 = 48, 52
S_O = 49
S_B = 53

SV = 7
def stamp(idx, v, dyn=None):
    if not STAMP: return
    if STAMP == 2 and dyn is not None: return
    if dyn is not None:
        e(f"s_add_u32 s62, s{dyn}, {idx}")
    e("s_memtime s[60:61]")
    e("s_waitcnt lgkmcnt(0)")
    if dyn is not None:
        e("s_mov_b32 s59, m0")
        e("s_mov_b32 m0, s62")
        e(f"v_writelane_b32 v{v}, s60, m0")
        e("s_mov_b32 m0, s59")
    else:
        e(f"v_writelane_b32 v{v}, s60, {idx}")
def stamp_out(v, vt):
    if not STAMP: return
    e("s_load_dwordx2 s[64:65], s[0:1], 48")
    e(f"s_mul_i32 s66, s{S_B}, 12")
    e("s_add_u32 s66, s66, s63")
    e("s_lshl_b32 s66, s66, 8")
    e(f"v_lshlrev_b32 v{vt}, 2, v0")
    e(f"v_add_u32 v{vt}, s66, v{vt}")
    e("s_waitcnt lgkmcnt(0)")
    e(f"global_store_dword v{vt}, v{v}, s[64:65]")
def srd(d, p, sz):
    e(f"s_mov_b32 s{d}, s{p}")
    e(f"s_and_b32 s{d+1}, s{p+1}, 0xffff")
    e(f"s_mov_b32 s{d+2}, {sz}")
    e(f"s_mov_b32 s{d+3}, 0x20000")

e("s_cmp_ge_u32 s2, 256")
e("s_cbranch_scc1 L_end")
if STAMP:
    e("s_memtime s[56:57]")
    e("s_memrealtime s[54:55]")
e("s_load_dwordx8 s[4:11], s[0:1], 0")
e("s_load_dwordx2 s[12:13], s[0:1], 32")
e("v_lshrrev_b32 v1, 6, v0")
e("v_and_b32 v0, 63, v0")
e(f"v_readfirstlane_b32 s{S_W}, v1")
e("s_cmp_lt_u32 s2, 32")
e("s_cbranch_scc1 L_help")
e(f"s_sub_u32 s{S_B}, s2, 32")
e(f"s_lshr_b32 s15, s{S_B}, 3")
e(f"s_and_b32 s14, s{S_B}, 1")
e("s_lshl_b32 s14, s14, 2")
e(f"s_and_b32 s{S_MT}, s15, 3")
e(f"s_add_u32 s{S_MT}, s{S_MT}, s14")
e(f"s_bfe_u32 s14, s{S_B}, 0x20001")
e("s_mul_i32 s14, s14, 7")
e(f"s_lshr_b32 s{S_NT}, s15, 2")
e(f"s_add_u32 s{S_NT}, s{S_NT}, s14")
if STAMP: e(f"s_mov_b32 s63, s{S_W}")
e(f"s_cmp_ge_u32 s{S_W}, 4")
e("s_cbranch_scc1 L_prod")

ACC = 8
XF = ACC + 128
WF = XF + 16
V_XB, V_XA, V_WB, V_XL, V_WL, V_O = 1, 2, 3, 4, 5, 6
def acc(i, j): b = ACC + (i * 2 + j) * 16; return f"v[{b}:{b+15}]"
def xf(i): b = XF + 4 * i; return f"v[{b}:{b+3}]"
def wf(bu, j): b = WF + 8 * bu + 4 * j; return f"v[{b}:{b+3}]"
c("consumer setup")
if CPRIO: e(f"s_setprio {CPRIO}")
if STAMP:
    e(f"v_mov_b32 v{SV}, 0")
    e("s_waitcnt lgkmcnt(0)")
    e(f"v_writelane_b32 v{SV}, s56, 0")
e(f"s_lshr_b32 s{S_T0}, s{S_W}, 1")
e(f"s_and_b32 s{S_T1}, s{S_W}, 1")
e("v_and_b32 v8, 31, v0")
e("v_lshrrev_b32 v9, 5, v0")
e("v_bfe_u32 v10, v8, 1, 3")
e("v_xor_b32 v10, v10, v9")
e("v_lshlrev_b32 v10, 4, v10")
e(f"v_lshl_add_u32 v{V_XL}, v8, 7, v10")
e(f"s_lshl_b32 s{S_T2}, s{S_T0}, 14")
e(f"s_add_u32 s{S_T2}, s{S_T2}, {XR}")
e(f"v_add_u32 v{V_XL}, s{S_T2}, v{V_XL}")
e("v_and_b32 v10, 1, v8")
e("v_lshrrev_b32 v11, 1, v8")
e("v_lshlrev_b32 v12, 1, v10")
e("v_xor_b32 v11, v11, v12")
e("v_lshl_add_u32 v11, v10, 4, v11")
e("v_lshlrev_b32 v11, 4, v11")
e(f"v_lshl_add_u32 v{V_WL}, v9, 9, v11")
e(f"s_lshl_b32 s{S_T2}, s{S_T1}, 11")
e(f"s_add_u32 s{S_T2}, s{S_T2}, {WR}")
e(f"v_add_u32 v{V_WL}, s{S_T2}, v{V_WL}")
e(f"s_movk_i32 s{S_T2}, {4*OROW}")
e(f"v_mul_lo_u32 v{V_O}, v9, s{S_T2}")
e(f"v_lshl_add_u32 v{V_O}, v8, 2, v{V_O}")
e(f"s_lshl_b32 s{S_O}, s{S_MT}, 1")
e(f"s_add_u32 s{S_O}, s{S_O}, s{S_T0}")
e(f"s_mul_i32 s{S_O}, s{S_O}, {128*OROW}")
e(f"s_lshl_b32 s{S_T2}, s{S_NT}, 1")
e(f"s_add_u32 s{S_T2}, s{S_T2}, s{S_T1}")
e(f"s_lshl_b32 s{S_T2}, s{S_T2}, 7")
e(f"s_add_u32 s{S_O}, s{S_O}, s{S_T2}")
e(f"v_mov_b32 v{V_XB}, v{V_XL}")
e(f"v_mov_b32 v{V_XA}, v{V_XL}")
e(f"v_mov_b32 v{V_WB}, v{V_WL}")
for r in range(128):
    e(f"v_mov_b32 v{ACC+r}, 0")
e(f"s_mov_b32 s{S_RND}, 0")
e(f"s_mov_b32 s{S_XSL}, 0")
e(f"s_mov_b32 s{S_WSL}, 0")
e("s_waitcnt lgkmcnt(0)")
srd(SO, 12, M*N*2)
stamp(1, SV)
e("s_barrier")
stamp(2, SV)
def rW(bu, j, ks): e(f"ds_read_b128 {wf(bu, j)}, v{V_WB} offset:{ks*4096 + j*1024}")
def rX(i): e(f"ds_read_b128 {xf(i)}, v{V_XA} offset:{i*4096}")
def mf(i, j, bu): e(f"v_mfma_f32_32x32x16_bf16 {acc(i,j)}, {xf(i)}, {wf(bu,j)}, {acc(i,j)}")
rW(0, 0, 0); rX(0); rW(0, 1, 0); rX(1); rX(2); rX(3)
lab("L_cloop")
for ks in range(4):
    bu = ks & 1; nb = bu ^ 1
    c(f"k16 step {ks}")
    if ks < 3:
        e(f"v_xor_b32 v{V_XA}, {32*(ks+1)}, v{V_XB}")
        e("s_waitcnt lgkmcnt(4)")
        mf(0, 0, bu)
        rW(nb, 0, ks + 1)
        e("s_waitcnt lgkmcnt(4)")
        mf(0, 1, bu)
        rX(0); rW(nb, 1, ks + 1)
        e("s_waitcnt lgkmcnt(5)")
        mf(1, 0, bu); mf(1, 1, bu)
        rX(1)
        if ks == 1:
            e(f"s_xor_b32 s{S_XSL}, s{S_XSL}, 32768")
            e(f"s_xor_b32 s{S_WSL}, s{S_WSL}, 16384")
        e("s_waitcnt lgkmcnt(5)")
        mf(2, 0, bu); mf(2, 1, bu)
        rX(2)
        e("s_waitcnt lgkmcnt(5)")
        mf(3, 0, bu); mf(3, 1, bu)
        rX(3)
    else:
        e(f"v_add_u32 v{V_XB}, s{S_XSL}, v{V_XL}")
        e(f"v_add_u32 v{V_XA}, s{S_XSL}, v{V_XL}")
        e(f"v_add_u32 v{V_WB}, s{S_WSL}, v{V_WL}")
        e("s_waitcnt lgkmcnt(4)")
        mf(0, 0, bu)
        e("s_waitcnt lgkmcnt(3)")
        mf(0, 1, bu)
        e("s_waitcnt lgkmcnt(2)")
        mf(1, 0, bu); mf(1, 1, bu)
        e(f"s_add_u32 s{S_RND}, s{S_RND}, 1")
        e("s_waitcnt lgkmcnt(0)")
        stamp(3, SV, dyn=S_RND)
        e("s_barrier")
        stamp(23, SV, dyn=S_RND)
        rW(nb, 0, 0); rX(0); rW(nb, 1, 0); rX(1)
        mf(2, 0, bu); mf(2, 1, bu)
        rX(2)
        e(f"s_cmp_lg_u32 s{S_RND}, 16")
        mf(3, 0, bu); mf(3, 1, bu)
        rX(3)
        e("s_cbranch_scc1 L_cloop")
c("epilogue")
e("s_nop 7")
stamp(20, SV)
e("s_waitcnt lgkmcnt(0)")
for t in range(1, 4):
    e(f"v_add_u32 v{XF+t}, {t*OROW}, v{V_O}")
e(f"v_mov_b32 v{XF}, v{V_O}")
for i in range(4):
    for rq in range(4):
        for t in range(4):
            r = rq * 4 + t
            a0 = ACC + (i * 2) * 16 + r; a1 = a0 + 16
            e(f"v_cvt_pk_bf16_f32 v{a0}, v{a0}, v{a1}")
        for t in range(4):
            r = rq * 4 + t
            a0 = ACC + (i * 2) * 16 + r
            e(f"buffer_store_dword v{a0}, v{XF+t}, s[{SO}:{SO+3}], s{S_O} offen {STFLAG}")
        e(f"s_add_u32 s{S_O}, s{S_O}, {8*OROW}")
stamp(21, SV)
if STAMP: e("s_waitcnt vmcnt(0)")
stamp(22, SV)
if STAMP:
    e("s_memrealtime s[60:61]")
    e("s_waitcnt lgkmcnt(0)")
    e(f"v_writelane_b32 v{SV}, s60, 61")
    e(f"v_writelane_b32 v{SV}, s54, 60")
stamp_out(SV, 1)
e("s_endpgm")

lab("L_prod")
VQO = 1
VXO = 5
V_W0, V_W1 = 9, 10
V_SA = 11
V_SR = 12
V_S = 14
V_D = 20
RAW = 36
PSV = 100
T = 104
def q(r, t): return RAW + r * 4 + t
if STAMP:
    e(f"v_mov_b32 v{PSV}, 0")
    e("s_waitcnt lgkmcnt(0)")
    e(f"v_writelane_b32 v{PSV}, s56, 0")
e(f"s_sub_u32 s{S_W}, s{S_W}, 4")
e(f"s_and_b32 s{S_T0}, s{S_W}, 3")
e(f"s_lshr_b32 s{S_T1}, s{S_W}, 2")
e(f"v_and_b32 v{T}, 31, v0")
e(f"v_lshrrev_b32 v{T+1}, 5, v0")
e(f"s_mov_b32 s{S_T2}, {8*QROW}")
e(f"v_mul_lo_u32 v{VQO}, v{T+1}, s{S_T2}")
e(f"v_lshl_add_u32 v{VQO}, v{T}, 4, v{VQO}")
for r in range(1, 4):
    e(f"v_add_u32 v{VQO+r}, {r*QROW}, v{VQO}")
e(f"s_mul_i32 s{S_QOFF}, s{S_W}, {16*QROW}")
e(f"s_lshl_b32 s{S_T2}, s{S_NT}, 9")
e(f"s_add_u32 s{S_QOFF}, s{S_QOFF}, s{S_T2}")
if NBURST:
    e(f"v_lshlrev_b32 v{T+9}, 6, v{T+1}")
    e(f"v_bfe_u32 v{T+10}, v0, 2, 3")
    e(f"v_add_u32 v{T+9}, v{T+9}, v{T+10}")
    e(f"s_movk_i32 s51, {QROW}")
    e(f"v_mul_lo_u32 v{T+9}, v{T+9}, s51")
    e(f"v_and_b32 v{T+10}, 3, v0")
    e(f"v_lshl_add_u32 v{T+9}, v{T+10}, 7, v{T+9}")
    e(f"s_lshl_b32 s58, s{S_T0}, 7")
    e(f"s_lshl_b32 s51, s{S_MT}, 3")
    e(f"s_add_u32 s58, s58, s51")
    e(f"s_add_u32 s58, s58, 64")
    e(f"s_mul_i32 s58, s58, {QROW}")
    e(f"s_add_u32 s58, s58, s{S_T2}")
e(f"v_lshrrev_b32 v{T+2}, 4, v0")
e(f"s_movk_i32 s{S_T2}, {4*OROW}")
e(f"v_mul_lo_u32 v{T+3}, v{T+2}, s{S_T2}")
e(f"v_and_b32 v{T+4}, 15, v0")
e(f"v_lshl_add_u32 v{T+3}, v{T+4}, 4, v{T+3}")
e(f"v_add_u32 v{T+4}, {16*OROW - 1024}, v{T+3}")
e(f"s_lshr_b32 s50, s{S_W}, 1")
e(f"s_mul_i32 s51, s50, {OROW}")
e(f"s_lshl_b32 s{S_T2}, s{S_NT}, 8")
e(f"s_add_u32 s51, s51, s{S_T2}")
e(f"s_lshl_b32 s50, s50, 11")
e(f"s_add_u32 s50, s50, {SCL}")
e(f"v_lshlrev_b32 v{T+5}, 1, v0")
e(f"v_lshrrev_b32 v{T+7}, 3, v0")
e(f"v_lshlrev_b32 v{T+7}, 11, v{T+7}")
e(f"v_and_b32 v{T+8}, 7, v0")
e(f"v_xor_b32 v{T+8}, v{T+8}, v{T+2}")
e(f"v_lshl_add_u32 v{VXO}, v{T+8}, 4, v{T+7}")
e(f"v_xor_b32 v{VXO+1}, 64, v{VXO}")
e(f"v_add_u32 v{VXO+2}, {2*15360}, v{VXO}")
e(f"v_add_u32 v{VXO+3}, {3*15360}, v{VXO+1}")
e(f"v_add_u32 v{VXO+1}, {1*15360}, v{VXO+1}")
e(f"s_xor_b32 s59, s{S_T1}, 1")
e(f"s_lshl_b32 s{S_XOFF}, s{S_MT}, 2")
e(f"s_add_u32 s{S_XOFF}, s{S_XOFF}, s{S_T0}")
e(f"s_lshl_b32 s{S_XOFF}, s{S_XOFF}, 17")
e(f"s_lshl_b32 s{S_T2}, s59, 7")
e(f"s_add_u32 s{S_XOFF}, s{S_XOFF}, s{S_T2}")
e(f"s_lshl_b32 s{S_XM0}, s{S_T0}, 13")
e(f"s_lshl_b32 s{S_T2}, s59, 15")
e(f"s_add_u32 s{S_XM0}, s{S_XM0}, s{S_T2}")
e(f"s_add_u32 s{S_XM0}, s{S_XM0}, {XR}")
e(f"v_and_b32 v{T+7}, 15, v{T}")
e(f"v_lshrrev_b32 v{T+8}, 4, v{T}")
e(f"v_lshlrev_b32 v{T+8}, 11, v{T+8}")
e(f"v_lshl_add_u32 v{T+8}, v{T+1}, 9, v{T+8}")
e(f"v_lshl_add_u32 v{T+8}, v{T+7}, 4, v{T+8}")
e(f"s_lshl_b32 s{S_T2}, s{S_W}, 12")
e(f"s_add_u32 s{S_T2}, s{S_T2}, {WR}")
e(f"v_add_u32 v{V_W0}, s{S_T2}, v{T+8}")
e(f"v_xor_b32 v{V_W1}, 32, v{V_W0}")
e(f"v_add_u32 v{V_W1}, 256, v{V_W1}")
e(f"v_lshlrev_b32 v{V_SA}, 3, v{T}")
e(f"v_add_u32 v{V_SA}, s50, v{V_SA}")
e(f"s_mov_b32 s{S_RND}, s{S_T1}")
e("s_mov_b32 m0, s50")
e("s_waitcnt lgkmcnt(0)")
srd(SQ, 6, 0 if NOQ else K*N*4)
srd(SC, 8, 32)
srd(SA, 10, 32*N*2)
srd(SX, 4, 0 if NOX else M*K*2)
stamp(1, PSV)
e(f"buffer_load_ushort v{T+6}, v{T+5}, s[{SC}:{SC+3}], 0 offen")
e(f"buffer_load_dwordx4 v{T+3}, s[{SA}:{SA+3}], s51 offen lds")
e(f"buffer_load_dwordx4 v{T+4}, s[{SA}:{SA+3}], s51 offen offset:1024 lds")

def qloads():
    e(f"s_add_u32 s{S_QOF2}, s{S_QOFF}, {4*QROW}")
    for r in range(8):
        b = q(r, 0)
        e(f"buffer_load_dwordx4 v[{b}:{b+3}], v{VQO+(r&3)}, s[{SQ}:{SQ+3}], s{S_QOFF if r < 4 else S_QOF2} offen")
    e(f"s_add_u32 s{S_QOFF}, s{S_QOFF}, {128*QROW}")
def xload(d):
    if d == 0:
        e(f"s_mov_b32 m0, s{S_XM0}")
        e(f"s_add_u32 s{S_XOF2}, s{S_XOFF}, 65536")
    if d == 4:
        e("s_add_u32 m0, m0, 4096")
        e(f"s_add_u32 s{S_XOFF}, s{S_XOFF}, 256")
    e(f"buffer_load_dwordx4 v{VXO+(d&3)}, s[{SX}:{SX+3}], s{S_XOFF if d < 4 else S_XOF2} offen offset:{1024*(d&3)} lds")
def SL():
    for sp in range(4):
        e(f"s_waitcnt vmcnt({6 - 2*sp})")
        if sp == 0:
            e(f"ds_read_b64 v[{V_SR}:{V_SR+1}], v{V_SA}")
            e(f"v_add_u32 v{V_SA}, 256, v{V_SA}")
        for r in (2*sp, 2*sp+1):
            for t in range(4):
                if not NOVALU: e(f"v_lshlrev_b32 v{q(r,t)}, 2, v{q(r,t)}")
        for r in (2*sp, 2*sp+1):
            for t in range(4):
                if not NOLOOK: e(f"ds_read_b32 v{q(r,t)}, v{q(r,t) if not NOVALU else T+5} offset:{TBL}")
def MC(withx):
    ops = []
    ops.append(f"v_lshlrev_b32 v{V_S}, 16, v{V_SR}")
    ops.append(f"v_and_b32 v{V_S+1}, 0xffff0000, v{V_SR}")
    ops.append(f"v_lshlrev_b32 v{V_S+2}, 16, v{V_SR+1}")
    ops.append(f"v_and_b32 v{V_S+3}, 0xffff0000, v{V_SR+1}")
    for sp in range(4):
        for r in (2*sp, 2*sp+1):
            for t in range(4):
                ops.append(f"v_mul_f32 v{q(r,t)}, v{V_S+t}, v{q(r,t)}")
        for t in range(4):
            ops.append(f"v_cvt_pk_bf16_f32 v{V_D+4*t+sp}, v{q(2*sp,t)}, v{q(2*sp+1,t)}")
    if NOVALU: ops = []
    per = (len(ops) + 7) // 8
    for d in range(8):
        if withx: xload(d)
        if d == 0: e("s_waitcnt lgkmcnt(0)")
        for o in ops[d*per:(d+1)*per]: e(o)

e(f"s_cmp_eq_u32 s{S_T1}, 0")
e("s_cbranch_scc1 L_pA")
c("group B: burst prefetch, X(0)")
if NBURST:
    e(f"s_cmp_ge_u32 s{S_T0}, {NBURST}")
    e("s_cbranch_scc1 L_noburst")
    e(f"buffer_load_dword v{T+10}, v{T+9}, s[{SQ}:{SQ+3}], s58 offen")
    lab("L_noburst")
for d in range(8): xload(d)
lab("L_pA")
qloads()
e("s_waitcnt vmcnt(10)")
e(f"v_lshlrev_b32 v{T+6}, 16, v{T+6}")
e(f"v_lshlrev_b32 v{T+5}, 2, v0")
e(f"ds_write_b32 v{T+5}, v{T+6} offset:{TBL}")
SL()
MC(False)
qloads()
e(f"s_cmp_eq_u32 s{S_T1}, 0")
e("s_cbranch_scc1 L_pD")
e("s_barrier")
lab("L_pD")
c("D phase: publish previous unit, shift+lookup next unit.  S_RND = epoch+1")
stamp(4, PSV, dyn=S_RND)
if WPRIO: e(f"s_setprio {WPRIO}")
if not NOWR:
    for t in range(4):
        e(f"ds_write_b128 v{V_W1 if t >> 1 else V_W0}, v[{V_D+4*t}:{V_D+4*t+3}] offset:{1024*(t&1)}")
if WPRIO: e("s_setprio 0")
e(f"s_cmp_gt_u32 s{S_RND}, 13")
e("s_cbranch_scc1 L_noSL")
SL()
e("s_waitcnt lgkmcnt(8)")
e("s_branch L_SLdone")
lab("L_noSL")
e("s_waitcnt lgkmcnt(0)")
lab("L_SLdone")
stamp(24, PSV, dyn=S_RND)
e(f"s_add_u32 s{S_RND}, s{S_RND}, 1")
e(f"s_cmp_eq_u32 s{S_RND}, 16")
e("s_barrier")
e("s_cbranch_scc1 L_pend")
c("L phase")
stamp(4, PSV, dyn=S_RND)
def mcops():
    ops = []
    ops.append(f"v_lshlrev_b32 v{V_S}, 16, v{V_SR}")
    ops.append(f"v_and_b32 v{V_S+1}, 0xffff0000, v{V_SR}")
    ops.append(f"v_lshlrev_b32 v{V_S+2}, 16, v{V_SR+1}")
    ops.append(f"v_and_b32 v{V_S+3}, 0xffff0000, v{V_SR+1}")
    for sp in range(4):
        for r in (2*sp, 2*sp+1):
            for t in range(4):
                ops.append(f"v_mul_f32 v{q(r,t)}, v{V_S+t}, v{q(r,t)}")
        for t in range(4):
            ops.append(f"v_cvt_pk_bf16_f32 v{V_D+4*t+sp}, v{q(2*sp,t)}, v{q(2*sp+1,t)}")
    return ops
def qload(r):
    b = q(r, 0)
    e(f"buffer_load_dwordx4 v[{b}:{b+3}], v{VQO+(r&3)}, s[{SQ}:{SQ+3}], s{S_QOFF if r < 4 else S_QOF2} offen")
ops = mcops()
pos = 0
def run(n):
    global pos
    for o in ops[pos:pos+n]:
        if not NOVALU: e(o)
    pos += n
e(f"s_cmp_gt_u32 s{S_RND}, 12")
e(f"s_cselect_b32 s{SQ+2}, 0, s{SQ+2}")
e(f"s_add_u32 s{S_QOF2}, s{S_QOFF}, {4*QROW}")
for r in range(QA):
    need = 4 + 12 * (r // 2 + 1)
    if pos < need: run(need - pos)
    qload(r)
e("s_waitcnt lgkmcnt(0)")
rem = len(ops) - pos
for d in range(8):
    xload(d)
    run((rem * (d + 1)) // 8 - (rem * d) // 8)
for r in range(QA, 8):
    qload(r)
e(f"s_add_u32 s{S_QOFF}, s{S_QOFF}, {128*QROW}")
e(f"s_waitcnt vmcnt({8 - QA})")
stamp(24, PSV, dyn=S_RND)
e(f"s_add_u32 s{S_RND}, s{S_RND}, 1")
e(f"s_cmp_lg_u32 s{S_RND}, 16")
e("s_barrier")
e("s_cbranch_scc1 L_pD")
lab("L_pend")
stamp_out(PSV, 1)
e("s_endpgm")

lab("L_help")
if HELP:
    e(f"s_cmp_lg_u32 s{S_W}, 0")
    e("s_cbranch_scc1 L_end")
    e("s_and_b32 s14, s2, 1")
    e("s_bfe_u32 s15, s2, 0x20001")
    e("s_lshr_b32 s36, s2, 3")
    e("s_lshl_b32 s37, s14, 4")
    e("s_lshl_b32 s38, s15, 2")
    e("s_add_u32 s37, s37, s38")
    e("s_add_u32 s37, s37, s36")
    e("s_lshl_b32 s37, s37, 17")
    e("v_lshlrev_b32 v1, 11, v0")
    e("v_lshrrev_b32 v2, 5, v0")
    e(f"s_movk_i32 s39, {QROW}")
    e("v_mul_lo_u32 v2, v2, s39")
    e("v_and_b32 v3, 31, v0")
    e("v_lshl_add_u32 v2, v3, 7, v2")
    e("v_cmp_gt_u32 vcc, 28, v3")
    e("v_mov_b32 v4, 0x7fffffff")
    e("s_lshl_b32 s38, s14, 2")
    e("v_cndmask_b32 v2, v4, v2, vcc")
    e("s_add_u32 s38, s38, s36")
    e("s_lshl_b32 s38, s38, 3")
    e(f"s_add_u32 s38, s38, {64*RB}")
    e(f"s_mul_i32 s38, s38, {QROW}")
    e("s_mul_i32 s39, s15, 3584")
    e("s_add_u32 s38, s38, s39")
    e("s_waitcnt lgkmcnt(0)")
    srd(SX, 4, M*K*2)
    srd(SQ, 6, K*N*4)
    for r in range(RB):
        e(f"buffer_load_dword v5, v1, s[{SX}:{SX+3}], s37 offen offset:{128*r}")
    e(f"s_add_u32 s37, s37, {128*RB}")
    e(f"s_mov_b32 s40, {16-RB}")
    lab("L_hloop")
    for k in range(4):
        e(f"buffer_load_dword v5, v2, s[{SQ}:{SQ+3}], s38 offen")
        e(f"s_add_u32 s38, s38, {2*QROW if k < 3 else 58*QROW}")
    e(f"buffer_load_dword v5, v1, s[{SX}:{SX+3}], s37 offen")
    e("s_add_u32 s37, s37, 128")
    e("s_waitcnt vmcnt(20)")
    e("s_sub_u32 s40, s40, 1")
    e("s_cmp_lg_u32 s40, 0")
    e("s_cbranch_scc1 L_hloop")
lab("L_end")
e("s_endpgm")

tail = f""".section .rodata,"a"
.p2align 6
.amdhsa_kernel {NAME}
  .amdhsa_next_free_vgpr 168
  .amdhsa_next_free_sgpr 80
  .amdhsa_accum_offset 168
  .amdhsa_group_segment_fixed_size 0
  .amdhsa_kernarg_size 56
  .amdhsa_user_sgpr_count 2
  .amdhsa_user_sgpr_kernarg_segment_ptr 1
  .amdhsa_system_sgpr_workgroup_id_x 1
  .amdhsa_float_denorm_mode_32 3
.end_amdhsa_kernel
"""
open(sys.argv[1], "w").write(hdr + "\n".join(x for x in L if x) + "\n" + tail)
print("LDS", LDS)
```

```python
import sys
NAME = "standalone__normalfloat_lut_codebook_lookup__prompt_kernel"
M, K, N = 2048, 1024, 3584
OPT = dict(a.split("=") for a in sys.argv[2:])
STAMP = int(OPT.get("stamp", 0))
CPRIO = int(OPT.get("cprio", 2)); DPRIO = int(OPT.get("dprio", 1))
STFLAG = OPT.get("st", "nt").replace("_", " ").replace("-", "")
HELP = int(OPT.get("help", 1)); MAP = int(OPT.get("map", 0))
MCD = int(OPT.get("mcd", 0))
NOWR = int(OPT.get("nowr", 0))
NBURST = int(OPT.get("nburst", 1))
RB = 1 + 2 * NBURST
CPF = int(OPT.get("cpf", 1))
Q2B4 = int(OPT.get("q2b4", 1)); BPRIO = int(OPT.get("bprio", 2)); X0PRIO = int(OPT.get("x0prio", 1))
TBL = 0
SCL = 256
WR = SCL + 8192
XR = WR + 32768
LDS = XR + 2 * 32768
QROW = N * 4; OROW = N * 2
L = []
def e(s): L.append("    " + s)
def lab(s): L.append(s + ":")
def c(s): L.append("    ; " + s)
hdr = f"""; Kernarg layout for this problem (56 bytes, ptrs only, base s[0:1]):
; @launch grid=(256,1,1) block=(768,1,1) lds={LDS}
.amdgcn_target "amdgcn-amd-amdhsa--gfx950"
.text
.globl {NAME}
.p2align 8
.type {NAME},@function
{NAME}:
"""
SX, SQ, SA, SO, SC = 16, 20, 24, 28, 32
S_NT, S_MT, S_W, S_RND = 36, 37, 38, 39
S_T0, S_T1, S_T2 = 40, 41, 42
S_QOFF, S_XOFF, S_XM0, S_XSL, S_WSL, S_QOF2, S_O, S_XOF2, S_B = 43, 44, 45, 46, 47, 48, 49, 52, 53
SV = 7
def stamp(idx, v, dyn=None):
    if not STAMP: return
    if STAMP >= 2 and dyn is not None: return
    if dyn is not None: e(f"s_add_u32 s62, s{dyn}, {idx}")
    e("s_memtime s[60:61]")
    e("s_waitcnt lgkmcnt(0)")
    if dyn is not None:
        e("s_mov_b32 s59, m0"); e("s_mov_b32 m0, s62")
        e(f"v_writelane_b32 v{v}, s60, m0")
        e("s_mov_b32 m0, s59")
    else:
        e(f"v_writelane_b32 v{v}, s60, {idx}")
def stamp_out(v, vt):
    if not STAMP: return
    e("s_load_dwordx2 s[64:65], s[0:1], 48")
    e(f"s_mul_i32 s66, s{S_B}, 12")
    e("s_add_u32 s66, s66, s63")
    e("s_lshl_b32 s66, s66, 8")
    e(f"v_lshlrev_b32 v{vt}, 2, v0")
    e(f"v_add_u32 v{vt}, s66, v{vt}")
    e("s_waitcnt lgkmcnt(0)")
    e(f"global_store_dword v{vt}, v{v}, s[64:65]")
def srd(d, p, sz):
    e(f"s_mov_b32 s{d}, s{p}")
    e(f"s_and_b32 s{d+1}, s{p+1}, 0xffff")
    e(f"s_mov_b32 s{d+2}, {sz}")
    e(f"s_mov_b32 s{d+3}, 0x20000")
def srd_hi(d, sz):
    e(f"s_mov_b32 s{d+2}, {sz}")
    e(f"s_mov_b32 s{d+3}, 0x20000")
def srd_lo(d, p):
    e(f"s_mov_b32 s{d}, s{p}")
    e(f"s_and_b32 s{d+1}, s{p+1}, 0xffff")
def xvoff(VX, T):
    e(f"v_lshrrev_b32 v{T}, 4, v0")
    e(f"v_and_b32 v{T+1}, 7, v0")
    e(f"v_xor_b32 v{T+1}, v{T+1}, v{T}")
    e(f"v_lshrrev_b32 v{T}, 3, v0")
    e(f"v_lshlrev_b32 v{T}, 11, v{T}")
    e(f"v_lshl_add_u32 v{VX}, v{T+1}, 4, v{T}")
    e(f"v_xor_b32 v{VX+1}, 64, v{VX}")
    e(f"v_add_u32 v{VX+2}, {2*15360}, v{VX}")
    e(f"v_add_u32 v{VX+3}, {3*15360}, v{VX+1}")
    e(f"v_add_u32 v{VX+1}, {1*15360}, v{VX+1}")

e("s_load_dwordx8 s[4:11], s[0:1], 0")
e("s_load_dwordx2 s[12:13], s[0:1], 32")
if STAMP:
    e("s_memtime s[56:57]")
    e("s_memrealtime s[54:55]")
if CPF:
    c("pull the kernel's own code into this XCD's L2 (threads 0..NL-1 of every workgroup, one line each)")
    e("s_getpc_b64 s[14:15]")
    e("v_lshlrev_b32 v2, 7, v0")
    e("v_cmp_gt_u32 vcc, CODE_LINES, v0")
    e("s_and_saveexec_b64 s[50:51], vcc")
    e("s_cbranch_execz L_nocpf")
    e("global_load_dword v160, v2, s[14:15]")
    lab("L_nocpf")
    e("s_mov_b64 exec, s[50:51]")
e("v_lshrrev_b32 v1, 6, v0")
e("v_and_b32 v0, 63, v0")
e(f"v_readfirstlane_b32 s{S_W}, v1")
e("s_cmp_ge_u32 s2, 256")
e("s_cbranch_scc1 L_end")
e("s_cmp_ge_u32 s2, 32")
e("s_cbranch_scc1 L_comp")
if True:
    e(f"s_cmp_lg_u32 s{S_W}, {0 if HELP else 99}")
    e("s_cbranch_scc1 L_end")
    e("s_lshr_b32 s36, s2, 3")
    e("v_lshlrev_b32 v1, 11, v0")
    if MAP == 0:
        e("s_and_b32 s14, s2, 1")
        e("s_bfe_u32 s15, s2, 0x20001")
        e("s_lshl_b32 s37, s14, 4")
        e("s_lshl_b32 s38, s15, 2")
        e("s_add_u32 s37, s37, s38")
        e("s_add_u32 s37, s37, s36")
        e("s_lshl_b32 s37, s37, 17")
        e("v_lshrrev_b32 v2, 5, v0")
        e(f"v_mul_u32_u24 v2, {QROW}, v2")
        e("v_and_b32 v3, 31, v0")
        e("v_lshl_add_u32 v2, v3, 7, v2")
        e("v_cmp_gt_u32 vcc, 28, v3")
        e("v_mov_b32 v4, 0x7fffffff")
        e("s_lshl_b32 s38, s14, 2")
        e("v_cndmask_b32 v2, v4, v2, vcc")
        e("s_add_u32 s38, s38, s36")
        e("s_lshl_b32 s38, s38, 3")
        e(f"s_add_u32 s38, s38, {64*RB}")
        e(f"s_mul_i32 s38, s38, {QROW}")
        e("s_mul_i32 s39, s15, 3584")
        e("s_add_u32 s38, s38, s39")
        step, last = 2, 58
    else:
        e("s_and_b32 s14, s2, 7")
        e("s_lshl_b32 s37, s14, 2")
        e("s_add_u32 s37, s37, s36")
        e("s_lshl_b32 s37, s37, 17")
        e("v_lshrrev_b32 v2, 4, v0")
        e(f"v_mul_u32_u24 v2, {QROW}, v2")
        e("v_and_b32 v3, 15, v0")
        e("v_lshl_add_u32 v2, v3, 7, v2")
        e("v_cmp_gt_u32 vcc, 14, v3")
        e("v_mov_b32 v4, 0x7fffffff")
        e("s_lshl_b32 s38, s36, 4")
        e("v_cndmask_b32 v2, v4, v2, vcc")
        e(f"s_add_u32 s38, s38, {64*RB}")
        e(f"s_mul_i32 s38, s38, {QROW}")
        e("s_mul_i32 s39, s14, 1792")
        e("s_add_u32 s38, s38, s39")
        step, last = 4, 52
    e("s_waitcnt lgkmcnt(0)")
    srd(SX, 4, M*K*2)
    srd(SQ, 6, K*N*4)
    for r in range(RB):
        e(f"buffer_load_dword v5, v1, s[{SX}:{SX+3}], s37 offen offset:{128*r}")
    e(f"s_add_u32 s37, s37, {128*RB}")
    e(f"s_mov_b32 s40, {16-RB}")
    lab("L_hloop")
    for k in range(4):
        e(f"buffer_load_dword v5, v2, s[{SQ}:{SQ+3}], s38 offen")
        e(f"s_add_u32 s38, s38, {step*QROW if k < 3 else last*QROW}")
    e(f"buffer_load_dword v5, v1, s[{SX}:{SX+3}], s37 offen")
    e("s_add_u32 s37, s37, 128")
    e("s_waitcnt vmcnt(20)")
    e("s_sub_u32 s40, s40, 1")
    e("s_cmp_lg_u32 s40, 0")
    e("s_cbranch_scc1 L_hloop")
e("s_endpgm")
lab("L_comp")
e(f"s_sub_u32 s{S_B}, s2, 32")
if MAP == 0:
    e(f"s_lshr_b32 s15, s{S_B}, 3")
    e(f"s_and_b32 s14, s{S_B}, 1")
    e("s_lshl_b32 s14, s14, 2")
    e(f"s_and_b32 s{S_MT}, s15, 3")
    e(f"s_add_u32 s{S_MT}, s{S_MT}, s14")
    e(f"s_bfe_u32 s14, s{S_B}, 0x20001")
    e("s_mul_i32 s14, s14, 7")
    e(f"s_lshr_b32 s{S_NT}, s15, 2")
    e(f"s_add_u32 s{S_NT}, s{S_NT}, s14")
else:
    e(f"s_and_b32 s14, s{S_B}, 7")
    e("s_mul_i32 s14, s14, 28")
    e(f"s_lshr_b32 s15, s{S_B}, 3")
    e("s_add_u32 s14, s14, s15")
    e(f"s_and_b32 s{S_MT}, s14, 7")
    e(f"s_lshr_b32 s{S_NT}, s14, 3")
if STAMP: e(f"s_mov_b32 s63, s{S_W}")
e(f"s_cmp_lt_u32 s{S_W}, 4")
e("s_cbranch_scc1 L_cons")

lab("L_prod")
VQO = 1; VXO = 5; V_W0, V_W1 = 9, 10; V_SA = 11; V_SR = 12; V_S = 14; V_D = 20; RAW = 36; PSV = 100; T = 104
def q(r, t): return RAW + r * 4 + t
e(f"s_sub_u32 s{S_W}, s{S_W}, 4")
e(f"s_lshr_b32 s{S_T1}, s{S_W}, 2")
e(f"s_cmp_lg_u32 s{S_T1}, 0")
e(f"s_setprio {BPRIO}")
e("s_cbranch_scc1 L_noprio")
e("s_setprio 3")
lab("L_noprio")
e(f"v_and_b32 v{T}, 31, v0")
e(f"v_lshrrev_b32 v{T+1}, 5, v0")
e(f"v_mul_u32_u24 v{VQO}, {8*QROW}, v{T+1}")
e(f"v_lshl_add_u32 v{VQO}, v{T}, 4, v{VQO}")
for r in range(1, 4):
    e(f"v_add_u32 v{VQO+r}, {r*QROW}, v{VQO}")
e(f"v_lshlrev_b32 v{V_SA}, 3, v{T}")
e(f"v_lshlrev_b32 v{T+5}, 1, v0")
e(f"s_mul_i32 s{S_QOFF}, s{S_W}, {16*QROW}")
e(f"s_lshl_b32 s{S_T2}, s{S_NT}, 9")
e(f"s_add_u32 s{S_QOFF}, s{S_QOFF}, s{S_T2}")
e(f"s_lshr_b32 s50, s{S_W}, 1")
e(f"s_mul_i32 s51, s50, {OROW}")
e(f"s_lshl_b32 s{S_T2}, s{S_NT}, 8")
e(f"s_add_u32 s51, s51, s{S_T2}")
srd_hi(SQ, K*N*4); srd_hi(SC, 32); srd_hi(SA, 32*N*2); srd_hi(SX, M*K*2)
if NBURST:
    e(f"s_sub_u32 s58, s{S_W}, 4")
    e(f"s_cmp_ge_u32 s58, {NBURST}")
    e("s_cbranch_scc1 L_noburst")
    e("s_setprio 3")
    e(f"v_bfe_u32 v{T+10}, v0, 2, 3")
    e(f"v_lshl_add_u32 v{T+9}, v{T+1}, 6, v{T+10}")
    e(f"v_mul_u32_u24 v{T+9}, {QROW}, v{T+9}")
    e(f"v_and_b32 v{T+10}, 3, v0")
    e(f"v_lshl_add_u32 v{T+9}, v{T+10}, 7, v{T+9}")
    e("s_lshl_b32 s58, s58, 4")
    e(f"s_add_u32 s58, s58, s{S_MT}")
    e("s_add_u32 s58, s58, 8")
    e(f"s_mul_i32 s58, s58, {8*QROW}")
    e(f"s_lshl_b32 s59, s{S_NT}, 9")
    e("s_add_u32 s58, s58, s59")
    e("s_waitcnt lgkmcnt(0)")
    srd_lo(SQ, 6)
    e(f"buffer_load_dword v{T+10}, v{T+9}, s[{SQ}:{SQ+3}], s58 offen")
    e(f"s_setprio {BPRIO}")
    lab("L_noburst")
e("s_waitcnt lgkmcnt(0)")
srd_lo(SC, 8)
e(f"buffer_load_ushort v{T+6}, v{T+5}, s[{SC}:{SC+3}], 0 offen")
srd_lo(SA, 10)
e(f"buffer_load_dwordx2 v[{V_SR}:{V_SR+1}], v{V_SA}, s[{SA}:{SA+3}], s51 offen")
srd_lo(SQ, 6)
def qload(r):
    b = q(r, 0)
    e(f"buffer_load_dwordx4 v[{b}:{b+3}], v{VQO+(r&3)}, s[{SQ}:{SQ+3}], s{S_QOFF if r < 4 else S_QOF2} offen")
def qloads():
    e(f"s_add_u32 s{S_QOF2}, s{S_QOFF}, {4*QROW}")
    for r in range(8): qload(r)
    e(f"s_add_u32 s{S_QOFF}, s{S_QOFF}, {128*QROW}")
qloads()
if STAMP:
    e(f"v_mov_b32 v{PSV}, 0")
    e(f"v_writelane_b32 v{PSV}, s56, 0")
stamp(1, PSV)
srd_lo(SX, 4)
e(f"s_and_b32 s{S_T0}, s{S_W}, 3")
xvoff(VXO, T + 7)
e(f"s_lshl_b32 s{S_XOFF}, s{S_MT}, 2")
e(f"s_add_u32 s{S_XOFF}, s{S_XOFF}, s{S_T0}")
e(f"s_lshl_b32 s{S_XOFF}, s{S_XOFF}, 17")
e(f"s_lshl_b32 s{S_T2}, s{S_T1}, 7")
e(f"s_sub_u32 s{S_T2}, 256, s{S_T2}")
e(f"s_add_u32 s{S_XOFF}, s{S_XOFF}, s{S_T2}")
e(f"s_lshl_b32 s{S_XM0}, s{S_W}, 13")
e(f"s_add_u32 s{S_XM0}, s{S_XM0}, {XR}")
e(f"v_and_b32 v{T+7}, 15, v{T}")
e(f"v_lshrrev_b32 v{T+8}, 4, v{T}")
e(f"v_lshlrev_b32 v{T+8}, 11, v{T+8}")
e(f"v_lshl_add_u32 v{T+8}, v{T+1}, 9, v{T+8}")
e(f"v_lshl_add_u32 v{T+8}, v{T+7}, 4, v{T+8}")
e(f"s_lshl_b32 s{S_T2}, s{S_W}, 12")
e(f"s_add_u32 s{S_T2}, s{S_T2}, {WR}")
e(f"v_add_u32 v{V_W0}, s{S_T2}, v{T+8}")
e(f"v_xor_b32 v{V_W1}, 32, v{V_W0}")
e(f"v_add_u32 v{V_W1}, 256, v{V_W1}")
e(f"s_lshl_b32 s50, s50, 8")
e(f"s_add_u32 s50, s50, {SCL + 1024}")
e(f"v_add_u32 v{V_SA}, s50, v{V_SA}")
def xload(d):
    if d == 0:
        e(f"s_mov_b32 m0, s{S_XM0}")
        e(f"s_add_u32 s{S_XOF2}, s{S_XOFF}, 65536")
    if d == 4:
        e("s_add_u32 m0, m0, 4096")
        e(f"s_add_u32 s{S_XOFF}, s{S_XOFF}, 256")
    e(f"buffer_load_dwordx4 v{VXO+(d&3)}, s[{SX}:{SX+3}], s{S_XOFF if d < 4 else S_XOF2} offen offset:{1024*(d&3)} lds")
def wwrite(t):
    if not NOWR:
        e(f"ds_write_b128 v{V_W1 if t >> 1 else V_W0}, v[{V_D+4*t}:{V_D+4*t+3}] offset:{1024*(t&1)}")
def SL(extra):
    for sp in range(4):
        e(f"s_waitcnt vmcnt({6 - 2*sp + extra})")
        for r in (2*sp, 2*sp+1):
            for t in range(4): e(f"v_lshlrev_b32 v{q(r,t)}, 2, v{q(r,t)}")
        for r in (2*sp, 2*sp+1):
            for t in range(4): e(f"ds_read_b32 v{q(r,t)}, v{q(r,t)} offset:{TBL}")
ops = []
ops.append(f"v_lshlrev_b32 v{V_S}, 16, v{V_SR}")
ops.append(f"v_and_b32 v{V_S+1}, 0xffff0000, v{V_SR}")
ops.append(f"v_lshlrev_b32 v{V_S+2}, 16, v{V_SR+1}")
ops.append(f"v_and_b32 v{V_S+3}, 0xffff0000, v{V_SR+1}")
for sp in range(4):
    for r in (2*sp, 2*sp+1):
        for t in range(4): ops.append(f"v_mul_f32 v{q(r,t)}, v{V_S+t}, v{q(r,t)}")
    for t in range(4): ops.append(f"v_cvt_pk_bf16_f32 v{V_D+4*t+sp}, v{q(2*sp,t)}, v{q(2*sp+1,t)}")
def MC1():
    if MCD:
        e("s_waitcnt lgkmcnt(8)")
        for o in ops[:MCD]: e(o)
c("start-up (both groups): codebook table, first unit straight through")
e("s_waitcnt vmcnt(9)")
e(f"v_lshlrev_b32 v{T+6}, 16, v{T+6}")
e(f"v_lshlrev_b32 v{T+5}, 2, v0")
e(f"ds_write_b32 v{T+5}, v{T+6} offset:{TBL}")
SL(0)
e("s_waitcnt lgkmcnt(0)")
for o in ops: e(o)
for t in range(4): wwrite(t)
e("s_setprio 0")
e(f"s_mov_b32 s{S_RND}, 3")
e(f"s_cmp_lg_u32 s{S_T1}, 0")
e("s_cbranch_scc1 L_pB")
if Q2B4: qloads()
e("s_waitcnt lgkmcnt(0)")
stamp(2, PSV)
e("s_barrier")
if not Q2B4: qloads()
e("s_branch L_pD")
lab("L_pB")
stamp(2, PSV)
e("s_barrier")
stamp(3, PSV, dyn=S_RND)
for d in range(8): xload(d)
qloads()
e("s_waitcnt vmcnt(8)")
e("s_branch L_Wdone")
lab("L_pL")
c("L phase (S_RND = epoch+3)")
stamp(3, PSV, dyn=S_RND)
for d in range(8): xload(d)
e("s_waitcnt lgkmcnt(0)")
for o in ops[MCD:]: e(o)
e(f"s_cmp_gt_u32 s{S_RND}, 15")
e("s_cbranch_scc1 L_noQ")
qloads()
e("s_waitcnt vmcnt(8)")
e("s_branch L_Qdone")
lab("L_noQ")
e("s_waitcnt vmcnt(0)")
lab("L_Qdone")
for t in range(4): wwrite(t)
lab("L_Wdone")
e("s_waitcnt lgkmcnt(0)")
stamp(23, PSV, dyn=S_RND)
e(f"s_add_u32 s{S_RND}, s{S_RND}, 1")
e(f"s_cmp_ge_u32 s{S_RND}, 17")
e("s_barrier")
e("s_cbranch_scc1 L_pend")
lab("L_pD")
c("D phase: shift + lookup")
stamp(3, PSV, dyn=S_RND)
e(f"s_setprio {DPRIO}")
e(f"ds_read_b64 v[{V_SR}:{V_SR+1}], v{V_SA}")
e(f"v_add_u32 v{V_SA}, 1024, v{V_SA}")
SL(0)
MC1()
e("s_setprio 0")
stamp(23, PSV, dyn=S_RND)
e(f"s_add_u32 s{S_RND}, s{S_RND}, 1")
e("s_barrier")
e("s_branch L_pL")
lab("L_pend")
stamp_out(PSV, 1)
e("s_endpgm")

ACC = 8
XF = ACC + 128
WF = XF + 16
V_XB, V_XA, V_WB, V_XL, V_WL, V_O = 1, 2, 3, 4, 5, 6
def acc(i, j): b = ACC + (i * 2 + j) * 16; return f"v[{b}:{b+15}]"
def xf(i): b = XF + 4 * i; return f"v[{b}:{b+3}]"
def wf(bu, j): b = WF + 8 * bu + 4 * j; return f"v[{b}:{b+3}]"
lab("L_cons")
e(f"s_setprio {X0PRIO}")
c("X(0) and the scale table are loaded by the (still idle) consumers")
xvoff(XF, XF + 4)
e(f"s_lshl_b32 s{S_XOFF}, s{S_MT}, 2")
e(f"s_add_u32 s{S_XOFF}, s{S_XOFF}, s{S_W}")
e(f"s_lshl_b32 s{S_XOFF}, s{S_XOFF}, 17")
e(f"s_add_u32 s{S_XOF2}, s{S_XOFF}, 65536")
e(f"s_lshl_b32 s{S_T2}, s{S_W}, 13")
e(f"s_add_u32 m0, s{S_T2}, {XR}")
srd_hi(SX, M*K*2)
srd_hi(SA, 32*N*2)
e(f"v_lshrrev_b32 v{XF+6}, 4, v0")
e(f"v_mul_u32_u24 v{XF+6}, {OROW}, v{XF+6}")
e(f"v_and_b32 v{XF+7}, 15, v0")
e(f"v_lshl_add_u32 v{XF+6}, v{XF+7}, 4, v{XF+6}")
e(f"v_add_u32 v{XF+7}, {4*OROW - 1024}, v{XF+6}")
e(f"s_mul_i32 s51, s{S_W}, {8*OROW}")
e(f"s_lshl_b32 s{S_T2}, s{S_NT}, 8")
e(f"s_add_u32 s51, s51, s{S_T2}")
e("s_waitcnt lgkmcnt(0)")
srd_lo(SX, 4)
for d in range(8):
    if d == 4: e("s_add_u32 m0, m0, 4096"); e("s_nop 0")
    e(f"buffer_load_dwordx4 v{XF+(d&3)}, s[{SX}:{SX+3}], s{S_XOFF if d < 4 else S_XOF2} offen offset:{1024*(d&3)} lds")
e(f"s_lshl_b32 s{S_T2}, s{S_W}, 11")
e(f"s_add_u32 m0, s{S_T2}, {SCL}")
srd_lo(SA, 10)
e(f"buffer_load_dwordx4 v{XF+6}, s[{SA}:{SA+3}], s51 offen lds")
e(f"buffer_load_dwordx4 v{XF+7}, s[{SA}:{SA+3}], s51 offen offset:1024 lds")
e("s_setprio 0")
if STAMP:
    e(f"v_mov_b32 v{SV}, 0")
    e(f"v_writelane_b32 v{SV}, s56, 0")
e(f"s_lshr_b32 s{S_T0}, s{S_W}, 1")
e(f"s_and_b32 s{S_T1}, s{S_W}, 1")
e("v_and_b32 v8, 31, v0")
e("v_lshrrev_b32 v9, 5, v0")
e("v_bfe_u32 v10, v8, 1, 3")
e("v_xor_b32 v10, v10, v9")
e("v_lshlrev_b32 v10, 4, v10")
e(f"v_lshl_add_u32 v{V_XL}, v8, 7, v10")
e(f"s_lshl_b32 s{S_T2}, s{S_T0}, 14")
e(f"s_add_u32 s{S_T2}, s{S_T2}, {XR}")
e(f"v_add_u32 v{V_XL}, s{S_T2}, v{V_XL}")
e("v_and_b32 v10, 1, v8")
e("v_lshrrev_b32 v11, 1, v8")
e("v_lshlrev_b32 v12, 1, v10")
e("v_xor_b32 v11, v11, v12")
e("v_lshl_add_u32 v11, v10, 4, v11")
e("v_lshlrev_b32 v11, 4, v11")
e(f"v_lshl_add_u32 v{V_WL}, v9, 9, v11")
e(f"s_lshl_b32 s{S_T2}, s{S_T1}, 11")
e(f"s_add_u32 s{S_T2}, s{S_T2}, {WR}")
e(f"v_add_u32 v{V_WL}, s{S_T2}, v{V_WL}")
e(f"v_mul_u32_u24 v{V_O}, {4*OROW}, v9")
e(f"v_lshl_add_u32 v{V_O}, v8, 2, v{V_O}")
e(f"s_lshl_b32 s{S_O}, s{S_MT}, 1")
e(f"s_add_u32 s{S_O}, s{S_O}, s{S_T0}")
e(f"s_mul_i32 s{S_O}, s{S_O}, {128*OROW}")
e(f"s_lshl_b32 s{S_T2}, s{S_NT}, 1")
e(f"s_add_u32 s{S_T2}, s{S_T2}, s{S_T1}")
e(f"s_lshl_b32 s{S_T2}, s{S_T2}, 7")
e(f"s_add_u32 s{S_O}, s{S_O}, s{S_T2}")
e(f"v_mov_b32 v{V_XB}, v{V_XL}")
e(f"v_mov_b32 v{V_XA}, v{V_XL}")
e(f"v_mov_b32 v{V_WB}, v{V_WL}")
for r in range(128): e(f"v_mov_b32 v{ACC+r}, 0")
e(f"s_mov_b32 s{S_RND}, 0")
e(f"s_mov_b32 s{S_XSL}, 0")
e(f"s_mov_b32 s{S_WSL}, 0")
srd(SO, 12, M*N*2)
e(f"s_setprio {CPRIO}")
e("s_waitcnt vmcnt(0)")
stamp(1, SV)
e("s_barrier")
stamp(2, SV)
def rW(bu, j, ks): e(f"ds_read_b128 {wf(bu, j)}, v{V_WB} offset:{ks*4096 + j*1024}")
def rX(i): e(f"ds_read_b128 {xf(i)}, v{V_XA} offset:{i*4096}")
def mf(i, j, bu): e(f"v_mfma_f32_32x32x16_bf16 {acc(i,j)}, {xf(i)}, {wf(bu,j)}, {acc(i,j)}")
rW(0, 0, 0); rX(0); rW(0, 1, 0); rX(1); rX(2); rX(3)
lab("L_cloop")
for ks in range(4):
    bu = ks & 1; nb = bu ^ 1
    c(f"k16 step {ks}")
    if ks < 3:
        e(f"v_xor_b32 v{V_XA}, {32*(ks+1)}, v{V_XB}")
        e("s_waitcnt lgkmcnt(4)")
        mf(0, 0, bu)
        rW(nb, 0, ks + 1)
        e("s_waitcnt lgkmcnt(4)")
        mf(0, 1, bu)
        rX(0); rW(nb, 1, ks + 1)
        e("s_waitcnt lgkmcnt(5)")
        mf(1, 0, bu); mf(1, 1, bu)
        rX(1)
        if ks == 1:
            e(f"s_xor_b32 s{S_XSL}, s{S_XSL}, 32768")
            e(f"s_xor_b32 s{S_WSL}, s{S_WSL}, 16384")
        e("s_waitcnt lgkmcnt(5)")
        mf(2, 0, bu); mf(2, 1, bu)
        rX(2)
        e("s_waitcnt lgkmcnt(5)")
        mf(3, 0, bu); mf(3, 1, bu)
        rX(3)
    else:
        e(f"v_add_u32 v{V_XB}, s{S_XSL}, v{V_XL}")
        e(f"v_add_u32 v{V_XA}, s{S_XSL}, v{V_XL}")
        e(f"v_add_u32 v{V_WB}, s{S_WSL}, v{V_WL}")
        e("s_waitcnt lgkmcnt(4)")
        mf(0, 0, bu)
        e("s_waitcnt lgkmcnt(3)")
        mf(0, 1, bu)
        e("s_waitcnt lgkmcnt(2)")
        mf(1, 0, bu); mf(1, 1, bu)
        e(f"s_add_u32 s{S_RND}, s{S_RND}, 1")
        e("s_waitcnt lgkmcnt(0)")
        stamp(3, SV, dyn=S_RND)
        e("s_barrier")
        stamp(23, SV, dyn=S_RND)
        rW(nb, 0, 0); rX(0); rW(nb, 1, 0); rX(1)
        mf(2, 0, bu); mf(2, 1, bu)
        rX(2)
        e(f"s_cmp_lg_u32 s{S_RND}, 16")
        mf(3, 0, bu); mf(3, 1, bu)
        rX(3)
        e("s_cbranch_scc1 L_cloop")
c("epilogue")
e("s_nop 7")
stamp(20, SV)
e("s_waitcnt lgkmcnt(0)")
for t in range(1, 4):
    e(f"v_add_u32 v{XF+t}, {t*OROW}, v{V_O}")
e(f"v_mov_b32 v{XF}, v{V_O}")
for i in range(4):
    for rq in range(4):
        for t in range(4):
            r = rq * 4 + t
            a0 = ACC + (i * 2) * 16 + r; a1 = a0 + 16
            e(f"v_cvt_pk_bf16_f32 v{a0}, v{a0}, v{a1}")
        for t in range(4):
            r = rq * 4 + t
            a0 = ACC + (i * 2) * 16 + r
            e(f"buffer_store_dword v{a0}, v{XF+t}, s[{SO}:{SO+3}], s{S_O} offen {STFLAG}")
        e(f"s_add_u32 s{S_O}, s{S_O}, {8*OROW}")
stamp(21, SV)
if STAMP: e("s_waitcnt vmcnt(0)")
stamp(22, SV)
if STAMP:
    e("s_memrealtime s[60:61]")
    e("s_waitcnt lgkmcnt(0)")
    e(f"v_writelane_b32 v{SV}, s60, 61")
    e(f"v_writelane_b32 v{SV}, s54, 60")
stamp_out(SV, 1)
e("s_endpgm")

lab("L_end")
e("s_endpgm")
tail = f""".section .rodata,"a"
.p2align 6
.amdhsa_kernel {NAME}
  .amdhsa_next_free_vgpr 168
  .amdhsa_next_free_sgpr 80
  .amdhsa_accum_offset 168
  .amdhsa_group_segment_fixed_size 0
  .amdhsa_kernarg_size 56
  .amdhsa_user_sgpr_count 2
  .amdhsa_user_sgpr_kernarg_segment_ptr 1
  .amdhsa_system_sgpr_workgroup_id_x 1
  .amdhsa_float_denorm_mode_32 3
.end_amdhsa_kernel
"""
body = "\n".join(x for x in L if x) + "\n"
body = body.replace("CODE_LINES", str(int(OPT.get("cl", 44))))
open(sys.argv[1], "w").write(hdr + body + tail)
print("LDS", LDS)
```

```python
import sys
NAME = "standalone__normalfloat_lut_codebook_lookup__prompt_kernel"
M, K, N = 2048, 1024, 3584
OPT = dict(a.split("=") for a in sys.argv[2:])
STAMP = int(OPT.get("stamp", 0))
CPRIO = int(OPT.get("cprio", 2)); DPRIO = int(OPT.get("dprio", 1))
STFLAG = OPT.get("st", "nt").replace("_", " ").replace("-", "")
HELP = int(OPT.get("help", 1)); MAP = int(OPT.get("map", 0))
MCD = int(OPT.get("mcd", 16))
NOWR = int(OPT.get("nowr", 0))
NBURST = int(OPT.get("nburst", 0))
RB = 1 + 2 * NBURST
CPF = int(OPT.get("cpf", 0))
BMODE = int(OPT.get("bmode", 0)); XB = int(OPT.get("xb", 8))
XD = int(OPT.get("xd", 4)); QINT = int(OPT.get("qint", 0))
Q2B4 = int(OPT.get("q2b4", 1)); BPRIO = int(OPT.get("bprio", 2)); X0PRIO = int(OPT.get("x0prio", 1))
TBL = 0
SCL = 256
WR = SCL + 8192
XR = WR + 32768
LDS = XR + 3 * 32768
QROW = N * 4; OROW = N * 2
L = []
def e(s): L.append("    " + s)
def lab(s): L.append(s + ":")
def c(s): L.append("    ; " + s)
hdr = f"""; Kernarg layout for this problem (56 bytes, ptrs only, base s[0:1]):
; @launch grid=(256,1,1) block=(768,1,1) lds={LDS}
.amdgcn_target "amdgcn-amd-amdhsa--gfx950"
.text
.globl {NAME}
.p2align 8
.type {NAME},@function
{NAME}:
"""
SX, SQ, SA, SO, SC = 16, 20, 24, 28, 32
S_NT, S_MT, S_W, S_RND = 36, 37, 38, 39
S_T0, S_T1, S_T2 = 40, 41, 42
S_QOFF, S_XOFF, S_XM0, S_XSL, S_WSL, S_QOF2, S_O, S_XOF2, S_B = 43, 44, 45, 46, 47, 48, 49, 52, 53
SV = 7
def stamp(idx, v, dyn=None):
    if not STAMP: return
    if STAMP >= 2 and dyn is not None: return
    if dyn is not None: e(f"s_add_u32 s62, s{dyn}, {idx}")
    e("s_memtime s[60:61]")
    e("s_waitcnt lgkmcnt(0)")
    if dyn is not None:
        e("s_mov_b32 s59, m0"); e("s_mov_b32 m0, s62")
        e(f"v_writelane_b32 v{v}, s60, m0")
        e("s_mov_b32 m0, s59")
    else:
        e(f"v_writelane_b32 v{v}, s60, {idx}")
def stamp_out(v, vt):
    if not STAMP: return
    e("s_load_dwordx2 s[64:65], s[0:1], 48")
    e(f"s_mul_i32 s66, s{S_B}, 12")
    e("s_add_u32 s66, s66, s63")
    e("s_lshl_b32 s66, s66, 8")
    e(f"v_lshlrev_b32 v{vt}, 2, v0")
    e(f"v_add_u32 v{vt}, s66, v{vt}")
    e("s_waitcnt lgkmcnt(0)")
    e(f"global_store_dword v{vt}, v{v}, s[64:65]")
def srd(d, p, sz):
    e(f"s_mov_b32 s{d}, s{p}")
    e(f"s_and_b32 s{d+1}, s{p+1}, 0xffff")
    e(f"s_mov_b32 s{d+2}, {sz}")
    e(f"s_mov_b32 s{d+3}, 0x20000")
def srd_hi(d, sz):
    e(f"s_mov_b32 s{d+2}, {sz}")
    e(f"s_mov_b32 s{d+3}, 0x20000")
def srd_lo(d, p):
    e(f"s_mov_b32 s{d}, s{p}")
    e(f"s_and_b32 s{d+1}, s{p+1}, 0xffff")
def xvoff(VX, T):
    e(f"v_lshrrev_b32 v{T}, 4, v0")
    e(f"v_and_b32 v{T+1}, 7, v0")
    e(f"v_xor_b32 v{T+1}, v{T+1}, v{T}")
    e(f"v_lshrrev_b32 v{T}, 3, v0")
    e(f"v_lshlrev_b32 v{T}, 11, v{T}")
    e(f"v_lshl_add_u32 v{VX}, v{T+1}, 4, v{T}")
    e(f"v_xor_b32 v{VX+1}, 64, v{VX}")
    e(f"v_add_u32 v{VX+2}, {2*15360}, v{VX}")
    e(f"v_add_u32 v{VX+3}, {3*15360}, v{VX+1}")
    e(f"v_add_u32 v{VX+1}, {1*15360}, v{VX+1}")

e("s_load_dwordx8 s[4:11], s[0:1], 0")
e("s_load_dwordx2 s[12:13], s[0:1], 32")
if STAMP:
    e("s_memtime s[56:57]")
    e("s_memrealtime s[54:55]")
if CPF:
    c("pull the kernel's own code into this XCD's L2 (threads 0..NL-1 of every workgroup, one line each)")
    e("s_getpc_b64 s[14:15]")
    e("v_lshlrev_b32 v2, 7, v0")
    e("v_cmp_gt_u32 vcc, CODE_LINES, v0")
    e("s_and_saveexec_b64 s[50:51], vcc")
    e("s_cbranch_execz L_nocpf")
    e("global_load_dword v160, v2, s[14:15]")
    lab("L_nocpf")
    e("s_mov_b64 exec, s[50:51]")
e("v_lshrrev_b32 v1, 6, v0")
e("v_and_b32 v0, 63, v0")
e(f"v_readfirstlane_b32 s{S_W}, v1")
e("s_cmp_ge_u32 s2, 256")
e("s_cbranch_scc1 L_end")
e("s_cmp_ge_u32 s2, 32")
e("s_cbranch_scc1 L_comp")
if True:
    e(f"s_cmp_lg_u32 s{S_W}, {0 if HELP else 99}")
    e("s_cbranch_scc1 L_end")
    e("s_lshr_b32 s36, s2, 3")
    e("v_lshlrev_b32 v1, 11, v0")
    if MAP == 0:
        e("s_and_b32 s14, s2, 1")
        e("s_bfe_u32 s15, s2, 0x20001")
        e("s_lshl_b32 s37, s14, 4")
        e("s_lshl_b32 s38, s15, 2")
        e("s_add_u32 s37, s37, s38")
        e("s_add_u32 s37, s37, s36")
        e("s_lshl_b32 s37, s37, 17")
        e("v_lshrrev_b32 v2, 5, v0")
        e(f"v_mul_u32_u24 v2, {QROW}, v2")
        e("v_and_b32 v3, 31, v0")
        e("v_lshl_add_u32 v2, v3, 7, v2")
        e("v_cmp_gt_u32 vcc, 28, v3")
        e("v_mov_b32 v4, 0x7fffffff")
        e("s_lshl_b32 s38, s14, 2")
        e("v_cndmask_b32 v2, v4, v2, vcc")
        e("s_add_u32 s38, s38, s36")
        e("s_lshl_b32 s38, s38, 3")
        e(f"s_add_u32 s38, s38, {64*RB}")
        e(f"s_mul_i32 s38, s38, {QROW}")
        e("s_mul_i32 s39, s15, 3584")
        e("s_add_u32 s38, s38, s39")
        step, last = 2, 58
    else:
        e("s_and_b32 s14, s2, 7")
        e("s_lshl_b32 s37, s14, 2")
        e("s_add_u32 s37, s37, s36")
        e("s_lshl_b32 s37, s37, 17")
        e("v_lshrrev_b32 v2, 4, v0")
        e(f"v_mul_u32_u24 v2, {QROW}, v2")
        e("v_and_b32 v3, 15, v0")
        e("v_lshl_add_u32 v2, v3, 7, v2")
        e("v_cmp_gt_u32 vcc, 14, v3")
        e("v_mov_b32 v4, 0x7fffffff")
        e("s_lshl_b32 s38, s36, 4")
        e("v_cndmask_b32 v2, v4, v2, vcc")
        e(f"s_add_u32 s38, s38, {64*RB}")
        e(f"s_mul_i32 s38, s38, {QROW}")
        e("s_mul_i32 s39, s14, 1792")
        e("s_add_u32 s38, s38, s39")
        step, last = 4, 52
    e("s_waitcnt lgkmcnt(0)")
    srd(SX, 4, M*K*2)
    srd(SQ, 6, K*N*4)
    for r in range(RB):
        e(f"buffer_load_dword v5, v1, s[{SX}:{SX+3}], s37 offen offset:{128*r}")
    e(f"s_add_u32 s37, s37, {128*RB}")
    e(f"s_mov_b32 s40, {16-RB}")
    lab("L_hloop")
    for k in range(4):
        e(f"buffer_load_dword v5, v2, s[{SQ}:{SQ+3}], s38 offen")
        e(f"s_add_u32 s38, s38, {step*QROW if k < 3 else last*QROW}")
    e(f"buffer_load_dword v5, v1, s[{SX}:{SX+3}], s37 offen")
    e("s_add_u32 s37, s37, 128")
    e("s_waitcnt vmcnt(20)")
    e("s_sub_u32 s40, s40, 1")
    e("s_cmp_lg_u32 s40, 0")
    e("s_cbranch_scc1 L_hloop")
e("s_endpgm")
lab("L_comp")
e(f"s_sub_u32 s{S_B}, s2, 32")
if MAP == 0:
    e(f"s_lshr_b32 s15, s{S_B}, 3")
    e(f"s_and_b32 s14, s{S_B}, 1")
    e("s_lshl_b32 s14, s14, 2")
    e(f"s_and_b32 s{S_MT}, s15, 3")
    e(f"s_add_u32 s{S_MT}, s{S_MT}, s14")
    e(f"s_bfe_u32 s14, s{S_B}, 0x20001")
    e("s_mul_i32 s14, s14, 7")
    e(f"s_lshr_b32 s{S_NT}, s15, 2")
    e(f"s_add_u32 s{S_NT}, s{S_NT}, s14")
else:
    e(f"s_and_b32 s14, s{S_B}, 7")
    e("s_mul_i32 s14, s14, 28")
    e(f"s_lshr_b32 s15, s{S_B}, 3")
    e("s_add_u32 s14, s14, s15")
    e(f"s_and_b32 s{S_MT}, s14, 7")
    e(f"s_lshr_b32 s{S_NT}, s14, 3")
if STAMP: e(f"s_mov_b32 s63, s{S_W}")
e(f"s_cmp_lt_u32 s{S_W}, 4")
e("s_cbranch_scc1 L_cons")

lab("L_prod")
VQO = 1; VXO = 5; V_W0, V_W1 = 9, 10; V_SA = 11; V_SR = 12; V_S = 14; V_D = 20; RAW = 36; PSV = 100; T = 104
def q(r, t): return RAW + r * 4 + t
e(f"s_sub_u32 s{S_W}, s{S_W}, 4")
e(f"s_lshr_b32 s{S_T1}, s{S_W}, 2")
e(f"s_cmp_lg_u32 s{S_T1}, 0")
e(f"s_setprio {BPRIO}")
e("s_cbranch_scc1 L_noprio")
e("s_setprio 3")
lab("L_noprio")
e(f"v_and_b32 v{T}, 31, v0")
e(f"v_lshrrev_b32 v{T+1}, 5, v0")
e(f"v_mul_u32_u24 v{VQO}, {8*QROW}, v{T+1}")
e(f"v_lshl_add_u32 v{VQO}, v{T}, 4, v{VQO}")
for r in range(1, 4):
    e(f"v_add_u32 v{VQO+r}, {r*QROW}, v{VQO}")
e(f"v_lshlrev_b32 v{V_SA}, 3, v{T}")
e(f"v_lshlrev_b32 v{T+5}, 1, v0")
e(f"s_mul_i32 s{S_QOFF}, s{S_W}, {16*QROW}")
e(f"s_lshl_b32 s{S_T2}, s{S_NT}, 9")
e(f"s_add_u32 s{S_QOFF}, s{S_QOFF}, s{S_T2}")
e(f"s_lshr_b32 s50, s{S_W}, 1")
e(f"s_mul_i32 s51, s50, {OROW}")
e(f"s_lshl_b32 s{S_T2}, s{S_NT}, 8")
e(f"s_add_u32 s51, s51, s{S_T2}")
srd_hi(SQ, K*N*4); srd_hi(SC, 32); srd_hi(SA, 32*N*2); srd_hi(SX, M*K*2)
if NBURST:
    e(f"s_sub_u32 s58, s{S_W}, 4")
    e(f"s_cmp_ge_u32 s58, {NBURST}")
    e("s_cbranch_scc1 L_noburst")
    e("s_setprio 3")
    e(f"v_bfe_u32 v{T+10}, v0, 2, 3")
    e(f"v_lshl_add_u32 v{T+9}, v{T+1}, 6, v{T+10}")
    e(f"v_mul_u32_u24 v{T+9}, {QROW}, v{T+9}")
    e(f"v_and_b32 v{T+10}, 3, v0")
    e(f"v_lshl_add_u32 v{T+9}, v{T+10}, 7, v{T+9}")
    e("s_lshl_b32 s58, s58, 4")
    e(f"s_add_u32 s58, s58, s{S_MT}")
    e("s_add_u32 s58, s58, 8")
    e(f"s_mul_i32 s58, s58, {8*QROW}")
    e(f"s_lshl_b32 s59, s{S_NT}, 9")
    e("s_add_u32 s58, s58, s59")
    e("s_waitcnt lgkmcnt(0)")
    srd_lo(SQ, 6)
    e(f"buffer_load_dword v{T+10}, v{T+9}, s[{SQ}:{SQ+3}], s58 offen")
    e(f"s_setprio {BPRIO}")
    lab("L_noburst")
e("s_waitcnt lgkmcnt(0)")
srd_lo(SC, 8)
e(f"buffer_load_ushort v{T+6}, v{T+5}, s[{SC}:{SC+3}], 0 offen")
srd_lo(SA, 10)
e(f"buffer_load_dwordx2 v[{V_SR}:{V_SR+1}], v{V_SA}, s[{SA}:{SA+3}], s51 offen")
srd_lo(SQ, 6)
def qload(r):
    b = q(r, 0)
    e(f"buffer_load_dwordx4 v[{b}:{b+3}], v{VQO+(r&3)}, s[{SQ}:{SQ+3}], s{S_QOFF if r < 4 else S_QOF2} offen")
def qloads():
    e(f"s_add_u32 s{S_QOF2}, s{S_QOFF}, {4*QROW}")
    for r in range(8): qload(r)
    e(f"s_add_u32 s{S_QOFF}, s{S_QOFF}, {128*QROW}")
qloads()
if STAMP:
    e(f"v_mov_b32 v{PSV}, 0")
    e(f"v_writelane_b32 v{PSV}, s56, 0")
stamp(1, PSV)
srd_lo(SX, 4)
e(f"s_and_b32 s{S_T0}, s{S_W}, 3")
xvoff(VXO, T + 7)
e(f"s_lshl_b32 s{S_XOFF}, s{S_MT}, 2")
e(f"s_add_u32 s{S_XOFF}, s{S_XOFF}, s{S_T0}")
e(f"s_lshl_b32 s{S_XOFF}, s{S_XOFF}, 17")
e(f"s_lshl_b32 s{S_T2}, s{S_T1}, 7")
e(f"s_sub_u32 s{S_T2}, 256, s{S_T2}")
e(f"s_add_u32 s{S_XOFF}, s{S_XOFF}, s{S_T2}")
e(f"s_lshl_b32 s{S_XM0}, s{S_T0}, 13")
e(f"s_add_u32 s{S_XM0}, s{S_XM0}, {XR}")
e(f"s_lshl_b32 s{S_XSL}, s{S_T2}, 8")
e(f"v_and_b32 v{T+7}, 15, v{T}")
e(f"v_lshrrev_b32 v{T+8}, 4, v{T}")
e(f"v_lshlrev_b32 v{T+8}, 12, v{T+8}")
e(f"v_lshl_add_u32 v{T+8}, v{T+1}, 8, v{T+8}")
e(f"v_lshl_add_u32 v{T+8}, v{T+7}, 4, v{T+8}")
e(f"s_lshl_b32 s{S_T2}, s50, 13")
e(f"s_and_b32 s58, s{S_W}, 1")
e("s_lshl_b32 s58, s58, 9")
e(f"s_add_u32 s{S_T2}, s{S_T2}, s58")
e(f"s_add_u32 s{S_T2}, s{S_T2}, {WR}")
e(f"v_add_u32 v{V_W0}, s{S_T2}, v{T+8}")
e(f"s_lshl_b32 s50, s50, 8")
e(f"s_add_u32 s50, s50, {SCL + 1024}")
e(f"v_add_u32 v{V_SA}, s50, v{V_SA}")
def xload(d):
    if d == 0:
        e(f"s_add_u32 m0, s{S_XM0}, s{S_XSL}")
        e(f"s_add_u32 s{S_XOF2}, s{S_XOFF}, 65536")
        e(f"s_sub_u32 s{S_XSL}, s{S_XSL}, 32768")
        e(f"s_cselect_b32 s{S_XSL}, {2*32768}, s{S_XSL}")
    if d == 4:
        e("s_add_u32 m0, m0, 4096")
        e(f"s_add_u32 s{S_XOFF}, s{S_XOFF}, 256")
    e(f"buffer_load_dwordx4 v{VXO+(d&3)}, s[{SX}:{SX+3}], s{S_XOFF if d < 4 else S_XOF2} offen offset:{1024*(d&3)} lds")
def wwrite(t):
    if not NOWR:
        e(f"ds_write_b128 v{V_W0}, v[{V_D+4*t}:{V_D+4*t+3}] offset:{1024*t}")
def SL(extra):
    for sp in range(4):
        e(f"s_waitcnt vmcnt({6 - 2*sp + extra})")
        for r in (2*sp, 2*sp+1):
            for t in range(4): e(f"v_lshlrev_b32 v{q(r,t)}, 2, v{q(r,t)}")
        for r in (2*sp, 2*sp+1):
            for t in range(4): e(f"ds_read_b32 v{q(r,t)}, v{q(r,t)} offset:{TBL}")
ops = []
ops.append(f"v_lshlrev_b32 v{V_S}, 16, v{V_SR}")
ops.append(f"v_and_b32 v{V_S+1}, 0xffff0000, v{V_SR}")
ops.append(f"v_lshlrev_b32 v{V_S+2}, 16, v{V_SR+1}")
ops.append(f"v_and_b32 v{V_S+3}, 0xffff0000, v{V_SR+1}")
for sp in range(4):
    for r in (2*sp, 2*sp+1):
        for t in range(4): ops.append(f"v_mul_f32 v{q(r,t)}, v{V_S+t}, v{q(r,t)}")
    for t in range(4): ops.append(f"v_cvt_pk_bf16_f32 v{V_D+4*t+sp}, v{q(2*sp,t)}, v{q(2*sp+1,t)}")
def MC1():
    if MCD:
        e("s_waitcnt lgkmcnt(8)")
        for o in ops[:MCD]: e(o)
if BMODE == 1:
    e(f"s_mov_b32 s{S_RND}, 3")
    e(f"s_cmp_lg_u32 s{S_T1}, 0")
    e("s_cbranch_scc1 L_pB")
c("start-up: codebook table, first unit straight through")
e("s_waitcnt vmcnt(9)")
e(f"v_lshlrev_b32 v{T+6}, 16, v{T+6}")
e(f"v_lshlrev_b32 v{T+5}, 2, v0")
e(f"ds_write_b32 v{T+5}, v{T+6} offset:{TBL}")
SL(0)
e("s_waitcnt lgkmcnt(0)")
for o in ops: e(o)
for t in range(4): wwrite(t)
e("s_setprio 0")
if BMODE == 0:
    e(f"s_mov_b32 s{S_RND}, 3")
    e(f"s_cmp_lg_u32 s{S_T1}, 0")
    e("s_cbranch_scc1 L_pB")
if Q2B4: qloads()
e("s_waitcnt lgkmcnt(0)")
stamp(2, PSV)
e("s_barrier")
if not Q2B4: qloads()
e("s_branch L_pD")
lab("L_pB")
if BMODE == 0:
    stamp(2, PSV)
    e("s_barrier")
    stamp(3, PSV, dyn=S_RND)
    for d in range(8): xload(d)
    qloads()
    e("s_waitcnt vmcnt(8)")
    e("s_branch L_Wdone")
else:
    e("s_setprio 0")
    for d in range(XB): xload(d)
    stamp(2, PSV)
    e("s_barrier")
    stamp(3, PSV, dyn=S_RND)
    for d in range(XB, 8): xload(d)
    e(f"s_setprio {DPRIO}")
    SL(8)
    MC1()
    e("s_setprio 0")
    e("s_branch L_pL2")
lab("L_pL")
c("L phase (S_RND = epoch+3)")
stamp(3, PSV, dyn=S_RND)
for d in range(XD, 8): xload(d)
lab("L_pL2")
e("s_waitcnt lgkmcnt(0)")
if QINT:
    e(f"s_cmp_gt_u32 s{S_RND}, 15")
    e(f"s_cselect_b32 s{SQ+2}, 0, s{SQ+2}")
    e(f"s_add_u32 s{S_QOF2}, s{S_QOFF}, {4*QROW}")
    pos = MCD
    for r in range(8):
        need = max(4 + 12 * (r // 2 + 1), min(len(ops), QINT))
        while pos < need:
            e(ops[pos]); pos += 1
        qload(r)
    e(f"s_add_u32 s{S_QOFF}, s{S_QOFF}, {128*QROW}")
else:
    for o in ops[MCD:]: e(o)
    e(f"s_cmp_gt_u32 s{S_RND}, 15")
    e("s_cbranch_scc1 L_noQ")
    qloads()
e("s_waitcnt vmcnt(8)")
e("s_branch L_Qdone")
lab("L_noQ")
e("s_waitcnt vmcnt(0)")
lab("L_Qdone")
for t in range(4): wwrite(t)
lab("L_Wdone")
e("s_waitcnt lgkmcnt(0)")
stamp(23, PSV, dyn=S_RND)
e(f"s_add_u32 s{S_RND}, s{S_RND}, 1")
e(f"s_cmp_ge_u32 s{S_RND}, 17")
e("s_barrier")
e("s_cbranch_scc1 L_pend")
lab("L_pD")
c("D phase: shift + lookup")
stamp(3, PSV, dyn=S_RND)
e(f"s_setprio {DPRIO}")
e(f"ds_read_b64 v[{V_SR}:{V_SR+1}], v{V_SA}")
e(f"v_add_u32 v{V_SA}, 1024, v{V_SA}")
SL(0)
MC1()
e("s_setprio 0")
for d in range(XD): xload(d)
stamp(23, PSV, dyn=S_RND)
e(f"s_add_u32 s{S_RND}, s{S_RND}, 1")
e("s_barrier")
e("s_branch L_pL")
lab("L_pend")
stamp_out(PSV, 1)
e("s_endpgm")

ACC = 8
XF = ACC + 128
WF = XF + 16
V_XB, V_XA, V_WB, V_XL, V_WL, V_O = 1, 2, 3, 4, 5, 6
def acc(i, j): b = ACC + (i * 2 + j) * 16; return f"v[{b}:{b+15}]"
def xf(i): b = XF + 4 * i; return f"v[{b}:{b+3}]"
def wf(bu, j): b = WF + 8 * bu + 4 * j; return f"v[{b}:{b+3}]"
lab("L_cons")
e(f"s_setprio {X0PRIO}")
c("X(0) and the scale table are loaded by the (still idle) consumers")
xvoff(XF, XF + 4)
e(f"s_lshl_b32 s{S_XOFF}, s{S_MT}, 2")
e(f"s_add_u32 s{S_XOFF}, s{S_XOFF}, s{S_W}")
e(f"s_lshl_b32 s{S_XOFF}, s{S_XOFF}, 17")
e(f"s_add_u32 s{S_XOF2}, s{S_XOFF}, 65536")
e(f"s_lshl_b32 s{S_T2}, s{S_W}, 11")
e(f"s_add_u32 m0, s{S_T2}, {SCL}")
srd_hi(SX, M*K*2)
srd_hi(SA, 32*N*2)
e(f"v_lshrrev_b32 v{XF+6}, 4, v0")
e(f"v_mul_u32_u24 v{XF+6}, {OROW}, v{XF+6}")
e(f"v_and_b32 v{XF+7}, 15, v0")
e(f"v_lshl_add_u32 v{XF+6}, v{XF+7}, 4, v{XF+6}")
e(f"v_add_u32 v{XF+7}, {4*OROW - 1024}, v{XF+6}")
e(f"s_mul_i32 s51, s{S_W}, {8*OROW}")
e(f"s_lshl_b32 s{S_T2}, s{S_NT}, 8")
e(f"s_add_u32 s51, s51, s{S_T2}")
e("s_waitcnt lgkmcnt(0)")
srd_lo(SA, 10)
e("s_setprio 3")
e(f"buffer_load_dwordx4 v{XF+6}, s[{SA}:{SA+3}], s51 offen lds")
e(f"buffer_load_dwordx4 v{XF+7}, s[{SA}:{SA+3}], s51 offen offset:1024 lds")
e(f"s_setprio {X0PRIO}")
e(f"s_lshl_b32 s{S_T2}, s{S_W}, 13")
e(f"s_add_u32 m0, s{S_T2}, {XR}")
srd_lo(SX, 4)
for d in range(8):
    if d == 4: e("s_add_u32 m0, m0, 4096"); e("s_nop 0")
    e(f"buffer_load_dwordx4 v{XF+(d&3)}, s[{SX}:{SX+3}], s{S_XOFF if d < 4 else S_XOF2} offen offset:{1024*(d&3)} lds")
e("s_setprio 0")
if STAMP:
    e(f"v_mov_b32 v{SV}, 0")
    e(f"v_writelane_b32 v{SV}, s56, 0")
e(f"s_lshr_b32 s{S_T0}, s{S_W}, 1")
e(f"s_and_b32 s{S_T1}, s{S_W}, 1")
e("v_and_b32 v8, 15, v0")
e("v_lshrrev_b32 v9, 4, v0")
e("v_lshrrev_b32 v10, 1, v8")
e("v_xor_b32 v10, v10, v9")
e("v_lshlrev_b32 v10, 4, v10")
e(f"v_lshl_add_u32 v{V_XL}, v8, 7, v10")
e(f"s_lshl_b32 s{S_T2}, s{S_T0}, 14")
e(f"s_add_u32 s{S_T2}, s{S_T2}, {XR}")
e(f"v_add_u32 v{V_XL}, s{S_T2}, v{V_XL}")
e(f"s_lshl_b32 s{S_T2}, s{S_T1}, 12")
e(f"s_add_u32 s{S_T2}, s{S_T2}, {WR}")
e(f"v_lshl_add_u32 v{V_WL}, v0, 4, s{S_T2}")
e(f"v_mul_u32_u24 v{V_O}, {4*OROW}, v9")
e(f"v_lshl_add_u32 v{V_O}, v8, 3, v{V_O}")
e(f"s_lshl_b32 s{S_O}, s{S_MT}, 1")
e(f"s_add_u32 s{S_O}, s{S_O}, s{S_T0}")
e(f"s_mul_i32 s{S_O}, s{S_O}, {128*OROW}")
e(f"s_lshl_b32 s{S_T2}, s{S_NT}, 1")
e(f"s_add_u32 s{S_T2}, s{S_T2}, s{S_T1}")
e(f"s_lshl_b32 s{S_T2}, s{S_T2}, 7")
e(f"s_add_u32 s{S_O}, s{S_O}, s{S_T2}")
e(f"v_mov_b32 v{V_XB}, v{V_XL}")
e(f"v_xor_b32 v{V_XA}, 64, v{V_XL}")
e(f"v_mov_b32 v{V_WB}, v{V_WL}")
for r in range(128): e(f"v_mov_b32 v{ACC+r}, 0")
e(f"s_mov_b32 s{S_RND}, 0")
e(f"s_mov_b32 s{S_XSL}, 0")
e(f"s_mov_b32 s{S_WSL}, 0")
srd(SO, 12, M*N*2)
e(f"s_setprio {CPRIO}")
e("s_waitcnt vmcnt(0)")
stamp(1, SV)
e("s_barrier")
stamp(2, SV)
def acc16(i, j): b = ACC + (i * 4 + j) * 4; return f"v[{b}:{b+3}]"
def xq(i): b = XF + 4 * (i & 3); return f"v[{b}:{b+3}]"
def wq(j): b = WF + 4 * j; return f"v[{b}:{b+3}]"
def rX(i, s): e(f"ds_read_b128 {xq(i)}, v{V_XA if s else V_XB} offset:{i*2048}")
def rW(j, s): e(f"ds_read_b128 {wq(j)}, v{V_WB} offset:{s*8192 + j*1024}")
def mf(i, j): e(f"v_mfma_f32_16x16x32_bf16 {acc16(i,j)}, {xq(i)}, {wq(j)}, {acc16(i,j)}")
rX(0, 0); rX(1, 0)
for j in range(4): rW(j, 0)
lab("L_cloop")
for s in range(2):
    for p in range(4):
        c(f"k32 step {s} pair {p}")
        i0, i1 = 2 * p, 2 * p + 1
        if p == 0:
            e("s_waitcnt lgkmcnt(3)")
            mf(i0, 0); rX(2, s); mf(i1, 0); rX(3, s)
            e("s_waitcnt lgkmcnt(4)")
            mf(i0, 1); mf(i1, 1)
            e("s_waitcnt lgkmcnt(3)")
            mf(i0, 2); mf(i1, 2)
            e("s_waitcnt lgkmcnt(2)")
            mf(i0, 3); mf(i1, 3)
        elif p < 3:
            e("s_waitcnt lgkmcnt(1)")
            mf(i0, 0);
            rX(i0 + 2, s)
            e("s_waitcnt lgkmcnt(1)")
            mf(i1, 0); rX(i1 + 2, s)
            mf(i0, 1); mf(i1, 1)
            if s == 1 and p == 1:
                e(f"s_add_u32 s{S_XSL}, s{S_XSL}, 32768")
                e(f"s_cmp_eq_u32 s{S_XSL}, {3*32768}")
            mf(i0, 2)
            if s == 1 and p == 1:
                e(f"s_cselect_b32 s{S_XSL}, 0, s{S_XSL}")
                e(f"s_xor_b32 s{S_WSL}, s{S_WSL}, 16384")
            if s == 1 and p == 2:
                e(f"v_add_u32 v{V_XB}, s{S_XSL}, v{V_XL}")
                e(f"v_add_u32 v{V_WB}, s{S_WSL}, v{V_WL}")
            mf(i1, 2)
            if s == 1 and p == 2:
                e(f"v_xor_b32 v{V_XA}, 64, v{V_XB}")
                e(f"s_add_u32 s{S_RND}, s{S_RND}, 1")
            mf(i0, 3); mf(i1, 3)
        else:
            ns = s ^ 1
            e("s_waitcnt lgkmcnt(0)")
            if s == 1:
                stamp(3, SV, dyn=S_RND)
                e("s_barrier")
                stamp(23, SV, dyn=S_RND)
            rX(0, ns)
            mf(i0, 0); rX(1, ns); mf(i1, 0); rW(0, ns)
            mf(i0, 1); mf(i1, 1); rW(1, ns)
            if s == 1: e(f"s_cmp_lg_u32 s{S_RND}, 16")
            mf(i0, 2); mf(i1, 2); rW(2, ns)
            mf(i0, 3); mf(i1, 3); rW(3, ns)
e("s_cbranch_scc1 L_cloop")
c("epilogue")
e("s_nop 7")
stamp(20, SV)
e("s_waitcnt lgkmcnt(0)")
for t in range(1, 4):
    e(f"v_add_u32 v{XF+t}, {t*OROW}, v{V_O}")
e(f"v_mov_b32 v{XF}, v{V_O}")
for i in range(8):
    for r in range(4):
        a = lambda j: ACC + (i * 4 + j) * 4 + r
        d = WF + 2 * r + 8 * (i & 1)
        e(f"v_cvt_pk_bf16_f32 v{d}, v{a(0)}, v{a(1)}")
        e(f"v_cvt_pk_bf16_f32 v{d+1}, v{a(2)}, v{a(3)}")
    for r in range(4):
        d = WF + 2 * r + 8 * (i & 1)
        e(f"buffer_store_dwordx2 v[{d}:{d+1}], v{XF+r}, s[{SO}:{SO+3}], s{S_O} offen {STFLAG}")
    e(f"s_add_u32 s{S_O}, s{S_O}, {16*OROW}")
stamp(21, SV)
if STAMP: e("s_waitcnt vmcnt(0)")
stamp(22, SV)
if STAMP:
    e("s_memrealtime s[60:61]")
    e("s_waitcnt lgkmcnt(0)")
    e(f"v_writelane_b32 v{SV}, s60, 61")
    e(f"v_writelane_b32 v{SV}, s54, 60")
stamp_out(SV, 1)
e("s_endpgm")

lab("L_end")
e("s_endpgm")
tail = f""".section .rodata,"a"
.p2align 6
.amdhsa_kernel {NAME}
  .amdhsa_next_free_vgpr 168
  .amdhsa_next_free_sgpr 80
  .amdhsa_accum_offset 168
  .amdhsa_group_segment_fixed_size 0
  .amdhsa_kernarg_size 56
  .amdhsa_user_sgpr_count 2
  .amdhsa_user_sgpr_kernarg_segment_ptr 1
  .amdhsa_system_sgpr_workgroup_id_x 1
  .amdhsa_float_denorm_mode_32 3
.end_amdhsa_kernel
"""
body = "\n".join(x for x in L if x) + "\n"
body = body.replace("CODE_LINES", str(int(OPT.get("cl", 44))))
open(sys.argv[1], "w").write(hdr + body + tail)
print("LDS", LDS)
```

```python
import sys
NAME = "standalone__normalfloat_lut_codebook_lookup__prompt_kernel"
M, K, N = 2048, 1024, 3584
OPT = dict(a.split("=") for a in sys.argv[2:])
STAMP = int(OPT.get("stamp", 0))
CPRIO = int(OPT.get("cprio", 2)); DPRIO = int(OPT.get("dprio", 1))
STFLAG = OPT.get("st", "nt").replace("_", " ").replace("-", "")
HELP = int(OPT.get("help", 1)); MAP = int(OPT.get("map", 0))
MCD = int(OPT.get("mcd", 16))
NOWR = int(OPT.get("nowr", 0))
NBURST = int(OPT.get("nburst", 0))
RB = 1 + 2 * NBURST
CPF = int(OPT.get("cpf", 0))
SPIN = OPT.get("spin", "")
BMODE = int(OPT.get("bmode", 0)); XB = int(OPT.get("xb", 8))
XD = int(OPT.get("xd", 4)); QINT = int(OPT.get("qint", 0))
Q2B4 = int(OPT.get("q2b4", 1)); BPRIO = int(OPT.get("bprio", 2)); X0PRIO = int(OPT.get("x0prio", 1))
TBL = 0
SCL = 256
WR = SCL + 8192
XR = WR + 32768
LDS = XR + 3 * 32768
QROW = N * 4; OROW = N * 2
L = []
def e(s): L.append("    " + s)
def lab(s): L.append(s + ":")
def c(s): L.append("    ; " + s)
hdr = f"""; Kernarg layout for this problem (56 bytes, ptrs only, base s[0:1]):
; @launch grid=(256,1,1) block=(768,1,1) lds={LDS}
.amdgcn_target "amdgcn-amd-amdhsa--gfx950"
.text
.globl {NAME}
.p2align 8
.type {NAME},@function
{NAME}:
"""
SX, SQ, SA, SO, SC = 16, 20, 24, 28, 32
S_NT, S_MT, S_W, S_RND = 36, 37, 38, 39
S_T0, S_T1, S_T2 = 40, 41, 42
S_QOFF, S_XOFF, S_XM0, S_XSL, S_WSL, S_QOF2, S_O, S_XOF2, S_B = 43, 44, 45, 46, 47, 48, 49, 52, 53
SV = 7
def stamp(idx, v, dyn=None):
    if not STAMP: return
    if STAMP >= 2 and dyn is not None: return
    if dyn is not None: e(f"s_add_u32 s62, s{dyn}, {idx}")
    e("s_memtime s[60:61]")
    e("s_waitcnt lgkmcnt(0)")
    if dyn is not None:
        e("s_mov_b32 s59, m0"); e("s_mov_b32 m0, s62")
        e(f"v_writelane_b32 v{v}, s60, m0")
        e("s_mov_b32 m0, s59")
    else:
        e(f"v_writelane_b32 v{v}, s60, {idx}")
def stamp_out(v, vt):
    if not STAMP: return
    e("s_load_dwordx2 s[64:65], s[0:1], 48")
    e(f"s_mul_i32 s66, s{S_B}, 12")
    e("s_add_u32 s66, s66, s63")
    e("s_lshl_b32 s66, s66, 8")
    e(f"v_lshlrev_b32 v{vt}, 2, v0")
    e(f"v_add_u32 v{vt}, s66, v{vt}")
    e("s_waitcnt lgkmcnt(0)")
    e(f"global_store_dword v{vt}, v{v}, s[64:65]")
def srd(d, p, sz):
    e(f"s_mov_b32 s{d}, s{p}")
    e(f"s_and_b32 s{d+1}, s{p+1}, 0xffff")
    e(f"s_mov_b32 s{d+2}, {sz}")
    e(f"s_mov_b32 s{d+3}, 0x20000")
def srd_hi(d, sz):
    e(f"s_mov_b32 s{d+2}, {sz}")
    e(f"s_mov_b32 s{d+3}, 0x20000")
def srd_lo(d, p):
    e(f"s_mov_b32 s{d}, s{p}")
    e(f"s_and_b32 s{d+1}, s{p+1}, 0xffff")
def xvoff(VX, T):
    e(f"v_lshrrev_b32 v{T}, 4, v0")
    e(f"v_and_b32 v{T+1}, 7, v0")
    e(f"v_xor_b32 v{T+1}, v{T+1}, v{T}")
    e(f"v_lshrrev_b32 v{T}, 3, v0")
    e(f"v_lshlrev_b32 v{T}, 11, v{T}")
    e(f"v_lshl_add_u32 v{VX}, v{T+1}, 4, v{T}")
    e(f"v_xor_b32 v{VX+1}, 64, v{VX}")
    e(f"v_add_u32 v{VX+2}, {2*15360}, v{VX}")
    e(f"v_add_u32 v{VX+3}, {3*15360}, v{VX+1}")
    e(f"v_add_u32 v{VX+1}, {1*15360}, v{VX+1}")

e("s_load_dwordx8 s[4:11], s[0:1], 0")
e("s_load_dwordx2 s[12:13], s[0:1], 32")
if SPIN:
    e("s_memrealtime s[54:55]")
    e("s_memtime s[56:57]")
if STAMP:
    e("s_memtime s[56:57]")
    e("s_memrealtime s[54:55]")
if CPF:
    c("pull the kernel's own code into this XCD's L2 (threads 0..NL-1 of every workgroup, one line each)")
    e("s_getpc_b64 s[14:15]")
    e("v_lshlrev_b32 v2, 7, v0")
    e("v_cmp_gt_u32 vcc, CODE_LINES, v0")
    e("s_and_saveexec_b64 s[50:51], vcc")
    e("s_cbranch_execz L_nocpf")
    e("global_load_dword v160, v2, s[14:15]")
    lab("L_nocpf")
    e("s_mov_b64 exec, s[50:51]")
e("v_lshrrev_b32 v1, 6, v0")
e("v_and_b32 v0, 63, v0")
e(f"v_readfirstlane_b32 s{S_W}, v1")
e("s_cmp_ge_u32 s2, 256")
e("s_cbranch_scc1 L_end")
e("s_cmp_ge_u32 s2, 32")
e("s_cbranch_scc1 L_comp")
if True:
    e(f"s_cmp_lg_u32 s{S_W}, {0 if HELP else 99}")
    e("s_cbranch_scc1 L_end")
    e("s_lshr_b32 s36, s2, 3")
    e("v_lshlrev_b32 v1, 11, v0")
    if MAP == 0:
        e("s_and_b32 s14, s2, 1")
        e("s_bfe_u32 s15, s2, 0x20001")
        e("s_lshl_b32 s37, s14, 4")
        e("s_lshl_b32 s38, s15, 2")
        e("s_add_u32 s37, s37, s38")
        e("s_add_u32 s37, s37, s36")
        e("s_lshl_b32 s37, s37, 17")
        e("v_lshrrev_b32 v2, 5, v0")
        e(f"v_mul_u32_u24 v2, {QROW}, v2")
        e("v_and_b32 v3, 31, v0")
        e("v_lshl_add_u32 v2, v3, 7, v2")
        e("v_cmp_gt_u32 vcc, 28, v3")
        e("v_mov_b32 v4, 0x7fffffff")
        e("s_lshl_b32 s38, s14, 2")
        e("v_cndmask_b32 v2, v4, v2, vcc")
        e("s_add_u32 s38, s38, s36")
        e("s_lshl_b32 s38, s38, 3")
        e(f"s_add_u32 s38, s38, {64*RB}")
        e(f"s_mul_i32 s38, s38, {QROW}")
        e("s_mul_i32 s39, s15, 3584")
        e("s_add_u32 s38, s38, s39")
        step, last = 2, 58
    else:
        e("s_and_b32 s14, s2, 7")
        e("s_lshl_b32 s37, s14, 2")
        e("s_add_u32 s37, s37, s36")
        e("s_lshl_b32 s37, s37, 17")
        e("v_lshrrev_b32 v2, 4, v0")
        e(f"v_mul_u32_u24 v2, {QROW}, v2")
        e("v_and_b32 v3, 15, v0")
        e("v_lshl_add_u32 v2, v3, 7, v2")
        e("v_cmp_gt_u32 vcc, 14, v3")
        e("v_mov_b32 v4, 0x7fffffff")
        e("s_lshl_b32 s38, s36, 4")
        e("v_cndmask_b32 v2, v4, v2, vcc")
        e(f"s_add_u32 s38, s38, {64*RB}")
        e(f"s_mul_i32 s38, s38, {QROW}")
        e("s_mul_i32 s39, s14, 1792")
        e("s_add_u32 s38, s38, s39")
        step, last = 4, 52
    e("s_waitcnt lgkmcnt(0)")
    srd(SX, 4, M*K*2)
    srd(SQ, 6, K*N*4)
    for r in range(RB):
        e(f"buffer_load_dword v5, v1, s[{SX}:{SX+3}], s37 offen offset:{128*r}")
    e(f"s_add_u32 s37, s37, {128*RB}")
    e(f"s_mov_b32 s40, {16-RB}")
    lab("L_hloop")
    for k in range(4):
        e(f"buffer_load_dword v5, v2, s[{SQ}:{SQ+3}], s38 offen")
        e(f"s_add_u32 s38, s38, {step*QROW if k < 3 else last*QROW}")
    e(f"buffer_load_dword v5, v1, s[{SX}:{SX+3}], s37 offen")
    e("s_add_u32 s37, s37, 128")
    e("s_waitcnt vmcnt(20)")
    e("s_sub_u32 s40, s40, 1")
    e("s_cmp_lg_u32 s40, 0")
    e("s_cbranch_scc1 L_hloop")
e("s_endpgm")
lab("L_comp")
e(f"s_sub_u32 s{S_B}, s2, 32")
if MAP == 0:
    e(f"s_lshr_b32 s15, s{S_B}, 3")
    e(f"s_and_b32 s14, s{S_B}, 1")
    e("s_lshl_b32 s14, s14, 2")
    e(f"s_and_b32 s{S_MT}, s15, 3")
    e(f"s_add_u32 s{S_MT}, s{S_MT}, s14")
    e(f"s_bfe_u32 s14, s{S_B}, 0x20001")
    e("s_mul_i32 s14, s14, 7")
    e(f"s_lshr_b32 s{S_NT}, s15, 2")
    e(f"s_add_u32 s{S_NT}, s{S_NT}, s14")
else:
    e(f"s_and_b32 s14, s{S_B}, 7")
    e("s_mul_i32 s14, s14, 28")
    e(f"s_lshr_b32 s15, s{S_B}, 3")
    e("s_add_u32 s14, s14, s15")
    e(f"s_and_b32 s{S_MT}, s14, 7")
    e(f"s_lshr_b32 s{S_NT}, s14, 3")
if STAMP: e(f"s_mov_b32 s63, s{S_W}")
e(f"s_cmp_lt_u32 s{S_W}, 4")
e("s_cbranch_scc1 L_cons")

lab("L_prod")
VQO = 1; VXO = 5; V_W0, V_W1 = 9, 10; V_SA = 11; V_SR = 12; V_S = 14; V_D = 20; RAW = 36; PSV = 100; T = 104
def q(r, t): return RAW + r * 4 + t
e(f"s_sub_u32 s{S_W}, s{S_W}, 4")
e(f"s_lshr_b32 s{S_T1}, s{S_W}, 2")
e(f"s_cmp_lg_u32 s{S_T1}, 0")
e(f"s_setprio {BPRIO}")
e("s_cbranch_scc1 L_noprio")
e("s_setprio 3")
lab("L_noprio")
e(f"v_and_b32 v{T}, 31, v0")
e(f"v_lshrrev_b32 v{T+1}, 5, v0")
e(f"v_mul_u32_u24 v{VQO}, {8*QROW}, v{T+1}")
e(f"v_lshl_add_u32 v{VQO}, v{T}, 4, v{VQO}")
for r in range(1, 4):
    e(f"v_add_u32 v{VQO+r}, {r*QROW}, v{VQO}")
e(f"v_lshlrev_b32 v{V_SA}, 3, v{T}")
e(f"v_lshlrev_b32 v{T+5}, 1, v0")
e(f"s_mul_i32 s{S_QOFF}, s{S_W}, {16*QROW}")
e(f"s_lshl_b32 s{S_T2}, s{S_NT}, 9")
e(f"s_add_u32 s{S_QOFF}, s{S_QOFF}, s{S_T2}")
e(f"s_lshr_b32 s50, s{S_W}, 1")
e(f"s_mul_i32 s51, s50, {OROW}")
e(f"s_lshl_b32 s{S_T2}, s{S_NT}, 8")
e(f"s_add_u32 s51, s51, s{S_T2}")
srd_hi(SQ, K*N*4); srd_hi(SC, 32); srd_hi(SA, 32*N*2); srd_hi(SX, M*K*2)
if NBURST:
    e(f"s_sub_u32 s58, s{S_W}, 4")
    e(f"s_cmp_ge_u32 s58, {NBURST}")
    e("s_cbranch_scc1 L_noburst")
    e("s_setprio 3")
    e(f"v_bfe_u32 v{T+10}, v0, 2, 3")
    e(f"v_lshl_add_u32 v{T+9}, v{T+1}, 6, v{T+10}")
    e(f"v_mul_u32_u24 v{T+9}, {QROW}, v{T+9}")
    e(f"v_and_b32 v{T+10}, 3, v0")
    e(f"v_lshl_add_u32 v{T+9}, v{T+10}, 7, v{T+9}")
    e("s_lshl_b32 s58, s58, 4")
    e(f"s_add_u32 s58, s58, s{S_MT}")
    e("s_add_u32 s58, s58, 8")
    e(f"s_mul_i32 s58, s58, {8*QROW}")
    e(f"s_lshl_b32 s59, s{S_NT}, 9")
    e("s_add_u32 s58, s58, s59")
    e("s_waitcnt lgkmcnt(0)")
    srd_lo(SQ, 6)
    e(f"buffer_load_dword v{T+10}, v{T+9}, s[{SQ}:{SQ+3}], s58 offen")
    e(f"s_setprio {BPRIO}")
    lab("L_noburst")
e("s_waitcnt lgkmcnt(0)")
srd_lo(SC, 8)
e(f"buffer_load_ushort v{T+6}, v{T+5}, s[{SC}:{SC+3}], 0 offen")
srd_lo(SA, 10)
e(f"buffer_load_dwordx2 v[{V_SR}:{V_SR+1}], v{V_SA}, s[{SA}:{SA+3}], s51 offen")
srd_lo(SQ, 6)
def qload(r):
    b = q(r, 0)
    e(f"buffer_load_dwordx4 v[{b}:{b+3}], v{VQO+(r&3)}, s[{SQ}:{SQ+3}], s{S_QOFF if r < 4 else S_QOF2} offen")
def qloads():
    e(f"s_add_u32 s{S_QOF2}, s{S_QOFF}, {4*QROW}")
    for r in range(8): qload(r)
    e(f"s_add_u32 s{S_QOFF}, s{S_QOFF}, {128*QROW}")
qloads()
if STAMP:
    e(f"v_mov_b32 v{PSV}, 0")
    e(f"v_writelane_b32 v{PSV}, s56, 0")
stamp(1, PSV)
srd_lo(SX, 4)
e(f"s_and_b32 s{S_T0}, s{S_W}, 3")
xvoff(VXO, T + 7)
e(f"s_lshl_b32 s{S_XOFF}, s{S_MT}, 2")
e(f"s_add_u32 s{S_XOFF}, s{S_XOFF}, s{S_T0}")
e(f"s_lshl_b32 s{S_XOFF}, s{S_XOFF}, 17")
e(f"s_lshl_b32 s{S_T2}, s{S_T1}, 7")
e(f"s_sub_u32 s{S_T2}, 256, s{S_T2}")
e(f"s_add_u32 s{S_XOFF}, s{S_XOFF}, s{S_T2}")
e(f"s_lshl_b32 s{S_XM0}, s{S_T0}, 13")
e(f"s_add_u32 s{S_XM0}, s{S_XM0}, {XR}")
e(f"s_lshl_b32 s{S_XSL}, s{S_T2}, 8")
e(f"v_and_b32 v{T+7}, 15, v{T}")
e(f"v_lshrrev_b32 v{T+8}, 4, v{T}")
e(f"v_lshlrev_b32 v{T+8}, 12, v{T+8}")
e(f"v_lshl_add_u32 v{T+8}, v{T+1}, 8, v{T+8}")
e(f"v_lshl_add_u32 v{T+8}, v{T+7}, 4, v{T+8}")
e(f"s_lshl_b32 s{S_T2}, s50, 13")
e(f"s_and_b32 s58, s{S_W}, 1")
e("s_lshl_b32 s58, s58, 9")
e(f"s_add_u32 s{S_T2}, s{S_T2}, s58")
e(f"s_add_u32 s{S_T2}, s{S_T2}, {WR}")
e(f"v_add_u32 v{V_W0}, s{S_T2}, v{T+8}")
e(f"s_lshl_b32 s50, s50, 8")
e(f"s_add_u32 s50, s50, {SCL + 1024}")
e(f"v_add_u32 v{V_SA}, s50, v{V_SA}")
def xload(d):
    if d == 0:
        e(f"s_add_u32 m0, s{S_XM0}, s{S_XSL}")
        e(f"s_add_u32 s{S_XOF2}, s{S_XOFF}, 65536")
        e(f"s_sub_u32 s{S_XSL}, s{S_XSL}, 32768")
        e(f"s_cselect_b32 s{S_XSL}, {2*32768}, s{S_XSL}")
    if d == 4:
        e("s_add_u32 m0, m0, 4096")
        e(f"s_add_u32 s{S_XOFF}, s{S_XOFF}, 256")
    e(f"buffer_load_dwordx4 v{VXO+(d&3)}, s[{SX}:{SX+3}], s{S_XOFF if d < 4 else S_XOF2} offen offset:{1024*(d&3)} lds")
def wwrite(t):
    if not NOWR:
        e(f"ds_write_b128 v{V_W0}, v[{V_D+4*t}:{V_D+4*t+3}] offset:{1024*t}")
def SL(extra):
    for sp in range(4):
        e(f"s_waitcnt vmcnt({6 - 2*sp + extra})")
        for r in (2*sp, 2*sp+1):
            for t in range(4): e(f"v_lshlrev_b32 v{q(r,t)}, 2, v{q(r,t)}")
        for r in (2*sp, 2*sp+1):
            for t in range(4): e(f"ds_read_b32 v{q(r,t)}, v{q(r,t)} offset:{TBL}")
ops = []
ops.append(f"v_lshlrev_b32 v{V_S}, 16, v{V_SR}")
ops.append(f"v_and_b32 v{V_S+1}, 0xffff0000, v{V_SR}")
ops.append(f"v_lshlrev_b32 v{V_S+2}, 16, v{V_SR+1}")
ops.append(f"v_and_b32 v{V_S+3}, 0xffff0000, v{V_SR+1}")
for sp in range(4):
    for r in (2*sp, 2*sp+1):
        for t in range(4): ops.append(f"v_mul_f32 v{q(r,t)}, v{V_S+t}, v{q(r,t)}")
    for t in range(4): ops.append(f"v_cvt_pk_bf16_f32 v{V_D+4*t+sp}, v{q(2*sp,t)}, v{q(2*sp+1,t)}")
def MC1():
    if MCD:
        e("s_waitcnt lgkmcnt(8)")
        for o in ops[:MCD]: e(o)
if BMODE == 1:
    e(f"s_mov_b32 s{S_RND}, 3")
    e(f"s_cmp_lg_u32 s{S_T1}, 0")
    e("s_cbranch_scc1 L_pB")
c("start-up: codebook table, first unit straight through")
e("s_waitcnt vmcnt(9)")
e(f"v_lshlrev_b32 v{T+6}, 16, v{T+6}")
e(f"v_lshlrev_b32 v{T+5}, 2, v0")
e(f"ds_write_b32 v{T+5}, v{T+6} offset:{TBL}")
SL(0)
e("s_waitcnt lgkmcnt(0)")
for o in ops: e(o)
for t in range(4): wwrite(t)
e("s_setprio 0")
if BMODE == 0:
    e(f"s_mov_b32 s{S_RND}, 3")
    e(f"s_cmp_lg_u32 s{S_T1}, 0")
    e("s_cbranch_scc1 L_pB")
if Q2B4: qloads()
e("s_waitcnt lgkmcnt(0)")
stamp(2, PSV)
e("s_barrier")
if not Q2B4: qloads()
e("s_branch L_pD")
lab("L_pB")
if BMODE == 0:
    stamp(2, PSV)
    e("s_barrier")
    stamp(3, PSV, dyn=S_RND)
    for d in range(8): xload(d)
    qloads()
    e("s_waitcnt vmcnt(8)")
    e("s_branch L_Wdone")
else:
    e("s_setprio 0")
    for d in range(XB): xload(d)
    stamp(2, PSV)
    e("s_barrier")
    stamp(3, PSV, dyn=S_RND)
    for d in range(XB, 8): xload(d)
    e(f"s_setprio {DPRIO}")
    SL(8)
    MC1()
    e("s_setprio 0")
    e("s_branch L_pL2")
lab("L_pL")
c("L phase (S_RND = epoch+3)")
stamp(3, PSV, dyn=S_RND)
for d in range(XD, 8): xload(d)
lab("L_pL2")
e("s_waitcnt lgkmcnt(0)")
if QINT:
    e(f"s_cmp_gt_u32 s{S_RND}, 15")
    e(f"s_cselect_b32 s{SQ+2}, 0, s{SQ+2}")
    e(f"s_add_u32 s{S_QOF2}, s{S_QOFF}, {4*QROW}")
    pos = MCD
    for r in range(8):
        need = max(4 + 12 * (r // 2 + 1), min(len(ops), QINT))
        while pos < need:
            e(ops[pos]); pos += 1
        qload(r)
    e(f"s_add_u32 s{S_QOFF}, s{S_QOFF}, {128*QROW}")
else:
    for o in ops[MCD:]: e(o)
    e(f"s_cmp_gt_u32 s{S_RND}, 15")
    e("s_cbranch_scc1 L_noQ")
    qloads()
e("s_waitcnt vmcnt(8)")
e("s_branch L_Qdone")
lab("L_noQ")
e("s_waitcnt vmcnt(0)")
lab("L_Qdone")
for t in range(4): wwrite(t)
lab("L_Wdone")
e("s_waitcnt lgkmcnt(0)")
stamp(23, PSV, dyn=S_RND)
e(f"s_add_u32 s{S_RND}, s{S_RND}, 1")
e(f"s_cmp_ge_u32 s{S_RND}, 17")
e("s_barrier")
e("s_cbranch_scc1 L_pend")
lab("L_pD")
c("D phase: shift + lookup")
stamp(3, PSV, dyn=S_RND)
e(f"s_setprio {DPRIO}")
e(f"ds_read_b64 v[{V_SR}:{V_SR+1}], v{V_SA}")
e(f"v_add_u32 v{V_SA}, 1024, v{V_SA}")
SL(0)
MC1()
e("s_setprio 0")
for d in range(XD): xload(d)
stamp(23, PSV, dyn=S_RND)
e(f"s_add_u32 s{S_RND}, s{S_RND}, 1")
e("s_barrier")
e("s_branch L_pL")
lab("L_pend")
stamp_out(PSV, 1)
e("s_endpgm")

ACC = 8
XF = ACC + 128
WF = XF + 16
V_XB, V_XA, V_WB, V_XL, V_WL, V_O = 1, 2, 3, 4, 5, 6
def acc(i, j): b = ACC + (i * 2 + j) * 16; return f"v[{b}:{b+15}]"
def xf(i): b = XF + 4 * i; return f"v[{b}:{b+3}]"
def wf(bu, j): b = WF + 8 * bu + 4 * j; return f"v[{b}:{b+3}]"
lab("L_cons")
e(f"s_setprio {X0PRIO}")
c("X(0) and the scale table are loaded by the (still idle) consumers")
xvoff(XF, XF + 4)
e(f"s_lshl_b32 s{S_XOFF}, s{S_MT}, 2")
e(f"s_add_u32 s{S_XOFF}, s{S_XOFF}, s{S_W}")
e(f"s_lshl_b32 s{S_XOFF}, s{S_XOFF}, 17")
e(f"s_add_u32 s{S_XOF2}, s{S_XOFF}, 65536")
e(f"s_lshl_b32 s{S_T2}, s{S_W}, 11")
e(f"s_add_u32 m0, s{S_T2}, {SCL}")
srd_hi(SX, M*K*2)
srd_hi(SA, 32*N*2)
e(f"v_lshrrev_b32 v{XF+6}, 4, v0")
e(f"v_mul_u32_u24 v{XF+6}, {OROW}, v{XF+6}")
e(f"v_and_b32 v{XF+7}, 15, v0")
e(f"v_lshl_add_u32 v{XF+6}, v{XF+7}, 4, v{XF+6}")
e(f"v_add_u32 v{XF+7}, {4*OROW - 1024}, v{XF+6}")
e(f"s_mul_i32 s51, s{S_W}, {8*OROW}")
e(f"s_lshl_b32 s{S_T2}, s{S_NT}, 8")
e(f"s_add_u32 s51, s51, s{S_T2}")
e("s_waitcnt lgkmcnt(0)")
srd_lo(SA, 10)
e("s_setprio 3")
e(f"buffer_load_dwordx4 v{XF+6}, s[{SA}:{SA+3}], s51 offen lds")
e(f"buffer_load_dwordx4 v{XF+7}, s[{SA}:{SA+3}], s51 offen offset:1024 lds")
e(f"s_setprio {X0PRIO}")
e(f"s_lshl_b32 s{S_T2}, s{S_W}, 13")
e(f"s_add_u32 m0, s{S_T2}, {XR}")
srd_lo(SX, 4)
for d in range(8):
    if d == 4: e("s_add_u32 m0, m0, 4096"); e("s_nop 0")
    e(f"buffer_load_dwordx4 v{XF+(d&3)}, s[{SX}:{SX+3}], s{S_XOFF if d < 4 else S_XOF2} offen offset:{1024*(d&3)} lds")
e("s_setprio 0")
if STAMP:
    e(f"v_mov_b32 v{SV}, 0")
    e(f"v_writelane_b32 v{SV}, s56, 0")
e(f"s_lshr_b32 s{S_T0}, s{S_W}, 1")
e(f"s_and_b32 s{S_T1}, s{S_W}, 1")
e("v_and_b32 v8, 15, v0")
e("v_lshrrev_b32 v9, 4, v0")
e("v_lshrrev_b32 v10, 1, v8")
e("v_xor_b32 v10, v10, v9")
e("v_lshlrev_b32 v10, 4, v10")
e(f"v_lshl_add_u32 v{V_XL}, v8, 7, v10")
e(f"s_lshl_b32 s{S_T2}, s{S_T0}, 14")
e(f"s_add_u32 s{S_T2}, s{S_T2}, {XR}")
e(f"v_add_u32 v{V_XL}, s{S_T2}, v{V_XL}")
e(f"s_lshl_b32 s{S_T2}, s{S_T1}, 12")
e(f"s_add_u32 s{S_T2}, s{S_T2}, {WR}")
e(f"v_lshl_add_u32 v{V_WL}, v0, 4, s{S_T2}")
e(f"v_mul_u32_u24 v{V_O}, {4*OROW}, v9")
e(f"v_lshl_add_u32 v{V_O}, v8, 3, v{V_O}")
e(f"s_lshl_b32 s{S_O}, s{S_MT}, 1")
e(f"s_add_u32 s{S_O}, s{S_O}, s{S_T0}")
e(f"s_mul_i32 s{S_O}, s{S_O}, {128*OROW}")
e(f"s_lshl_b32 s{S_T2}, s{S_NT}, 1")
e(f"s_add_u32 s{S_T2}, s{S_T2}, s{S_T1}")
e(f"s_lshl_b32 s{S_T2}, s{S_T2}, 7")
e(f"s_add_u32 s{S_O}, s{S_O}, s{S_T2}")
e(f"v_mov_b32 v{V_XB}, v{V_XL}")
e(f"v_xor_b32 v{V_XA}, 64, v{V_XL}")
e(f"v_mov_b32 v{V_WB}, v{V_WL}")
for r in range(128): e(f"v_mov_b32 v{ACC+r}, 0")
e(f"s_mov_b32 s{S_RND}, 0")
e(f"s_mov_b32 s{S_XSL}, 0")
e(f"s_mov_b32 s{S_WSL}, 0")
srd(SO, 12, M*N*2)
e(f"s_setprio {CPRIO}")
e("s_waitcnt vmcnt(0)")
stamp(1, SV)
e("s_barrier")
if SPIN:
    e("s_memrealtime s[64:65]")
    e("s_memtime s[66:67]")
stamp(2, SV)
def acc16(i, j): b = ACC + (i * 4 + j) * 4; return f"v[{b}:{b+3}]"
def xq(i): b = XF + 4 * (i & 3); return f"v[{b}:{b+3}]"
def wq(j): b = WF + 4 * j; return f"v[{b}:{b+3}]"
def rX(i, s): e(f"ds_read_b128 {xq(i)}, v{V_XA if s else V_XB} offset:{i*2048}")
def rW(j, s): e(f"ds_read_b128 {wq(j)}, v{V_WB} offset:{s*8192 + j*1024}")
def mf(i, j): e(f"v_mfma_f32_16x16x32_bf16 {acc16(i,j)}, {xq(i)}, {wq(j)}, {acc16(i,j)}")
rX(0, 0); rX(1, 0)
for j in range(4): rW(j, 0)
lab("L_cloop")
for s in range(2):
    for p in range(4):
        c(f"k32 step {s} pair {p}")
        i0, i1 = 2 * p, 2 * p + 1
        if p == 0:
            e("s_waitcnt lgkmcnt(3)")
            mf(i0, 0); rX(2, s); mf(i1, 0); rX(3, s)
            e("s_waitcnt lgkmcnt(4)")
            mf(i0, 1); mf(i1, 1)
            e("s_waitcnt lgkmcnt(3)")
            mf(i0, 2); mf(i1, 2)
            e("s_waitcnt lgkmcnt(2)")
            mf(i0, 3); mf(i1, 3)
        elif p < 3:
            e("s_waitcnt lgkmcnt(1)")
            mf(i0, 0);
            rX(i0 + 2, s)
            e("s_waitcnt lgkmcnt(1)")
            mf(i1, 0); rX(i1 + 2, s)
            mf(i0, 1); mf(i1, 1)
            if s == 1 and p == 1:
                e(f"s_add_u32 s{S_XSL}, s{S_XSL}, 32768")
                e(f"s_cmp_eq_u32 s{S_XSL}, {3*32768}")
            mf(i0, 2)
            if s == 1 and p == 1:
                e(f"s_cselect_b32 s{S_XSL}, 0, s{S_XSL}")
                e(f"s_xor_b32 s{S_WSL}, s{S_WSL}, 16384")
            if s == 1 and p == 2:
                e(f"v_add_u32 v{V_XB}, s{S_XSL}, v{V_XL}")
                e(f"v_add_u32 v{V_WB}, s{S_WSL}, v{V_WL}")
            mf(i1, 2)
            if s == 1 and p == 2:
                e(f"v_xor_b32 v{V_XA}, 64, v{V_XB}")
                e(f"s_add_u32 s{S_RND}, s{S_RND}, 1")
            mf(i0, 3); mf(i1, 3)
        else:
            ns = s ^ 1
            e("s_waitcnt lgkmcnt(0)")
            if s == 1:
                stamp(3, SV, dyn=S_RND)
                e("s_barrier")
                stamp(23, SV, dyn=S_RND)
            rX(0, ns)
            mf(i0, 0); rX(1, ns); mf(i1, 0); rW(0, ns)
            mf(i0, 1); mf(i1, 1); rW(1, ns)
            if s == 1: e(f"s_cmp_lg_u32 s{S_RND}, 16")
            mf(i0, 2); mf(i1, 2); rW(2, ns)
            mf(i0, 3); mf(i1, 3); rW(3, ns)
e("s_cbranch_scc1 L_cloop")
c("epilogue")
e("s_nop 7")
if SPIN:
    e("s_memrealtime s[68:69]")
    e("s_memtime s[70:71]")
stamp(20, SV)
e("s_waitcnt lgkmcnt(0)")
for t in range(1, 4):
    e(f"v_add_u32 v{XF+t}, {t*OROW}, v{V_O}")
e(f"v_mov_b32 v{XF}, v{V_O}")
for i in range(8):
    for r in range(4):
        a = lambda j: ACC + (i * 4 + j) * 4 + r
        d = WF + 2 * r + 8 * (i & 1)
        e(f"v_cvt_pk_bf16_f32 v{d}, v{a(0)}, v{a(1)}")
        e(f"v_cvt_pk_bf16_f32 v{d+1}, v{a(2)}, v{a(3)}")
    for r in range(4):
        d = WF + 2 * r + 8 * (i & 1)
        e(f"buffer_store_dwordx2 v[{d}:{d+1}], v{XF+r}, s[{SO}:{SO+3}], s{S_O} offen {STFLAG}")
    e(f"s_add_u32 s{S_O}, s{S_O}, {16*OROW}")
stamp(21, SV)
if STAMP: e("s_waitcnt vmcnt(0)")
stamp(22, SV)
if STAMP:
    e("s_memrealtime s[60:61]")
    e("s_waitcnt lgkmcnt(0)")
    e(f"v_writelane_b32 v{SV}, s60, 61")
    e(f"v_writelane_b32 v{SV}, s54, 60")
stamp_out(SV, 1)
if SPIN:
    e("s_waitcnt vmcnt(0)")
    e("s_memrealtime s[72:73]")
    e("s_memtime s[74:75]")
    e("s_waitcnt lgkmcnt(0)")
    if SPIN == "allt": e("s_sub_u32 s76, s72, s54")
    if SPIN == "allc": e("s_sub_u32 s76, s74, s56"); e("s_lshr_b32 s76, s76, 4")
    if SPIN == "loopt": e("s_sub_u32 s76, s68, s64")
    if SPIN == "loopc": e("s_sub_u32 s76, s70, s66"); e("s_lshr_b32 s76, s76, 4")
    if SPIN == "prot": e("s_sub_u32 s76, s64, s54"); e("s_lshl_b32 s76, s76, 2")
    if SPIN == "epit": e("s_sub_u32 s76, s72, s68"); e("s_lshl_b32 s76, s76, 2")
    if SPIN == "zero": e("s_mov_b32 s76, 0")
    e("s_min_u32 s76, s76, 20000")
    lab("L_spin")
    e("s_memrealtime s[60:61]")
    e("s_waitcnt lgkmcnt(0)")
    e("s_sub_u32 s60, s60, s72")
    e("s_cmp_lt_u32 s60, s76")
    e("s_cbranch_scc1 L_spin")
e("s_endpgm")

lab("L_end")
e("s_endpgm")
tail = f""".section .rodata,"a"
.p2align 6
.amdhsa_kernel {NAME}
  .amdhsa_next_free_vgpr 168
  .amdhsa_next_free_sgpr 80
  .amdhsa_accum_offset 168
  .amdhsa_group_segment_fixed_size 0
  .amdhsa_kernarg_size 56
  .amdhsa_user_sgpr_count 2
  .amdhsa_user_sgpr_kernarg_segment_ptr 1
  .amdhsa_system_sgpr_workgroup_id_x 1
  .amdhsa_float_denorm_mode_32 3
.end_amdhsa_kernel
"""
body = "\n".join(x for x in L if x) + "\n"
body = body.replace("CODE_LINES", str(int(OPT.get("cl", 44))))
open(sys.argv[1], "w").write(hdr + body + tail)
print("LDS", LDS)
```

```python
import sys
NAME = "standalone__normalfloat_lut_codebook_lookup__prompt_kernel"
M, K, N = 2048, 1024, 3584
OPT = dict(a.split("=") for a in sys.argv[2:])
STAMP = int(OPT.get("stamp", 0))
CPRIO = int(OPT.get("cprio", 2)); DPRIO = int(OPT.get("dprio", 1))
STFLAG = OPT.get("st", "nt").replace("_", " ").replace("-", "")
HELP = int(OPT.get("help", 1)); MAP = int(OPT.get("map", 0))
MCD = int(OPT.get("mcd", 40))
NOWR = int(OPT.get("nowr", 0))
NBURST = int(OPT.get("nburst", 0))
RB = 1 + 2 * NBURST
CPF = int(OPT.get("cpf", 0))
WMID = int(OPT.get("wmid", 8)); LPRIO = int(OPT.get("lprio", 0))
EARLY = int(OPT.get("early", 1))
SB = int(OPT.get("sb", 8)); SALT = int(OPT.get("salt", 0))
BMODE = int(OPT.get("bmode", 0)); XB = int(OPT.get("xb", 8))
XD = int(OPT.get("xd", 6)); QINT = int(OPT.get("qint", 0))
Q2B4 = int(OPT.get("q2b4", 1)); BPRIO = int(OPT.get("bprio", 2)); X0PRIO = int(OPT.get("x0prio", 1))
TBL = 0
SCL = 256
WR = SCL + 8192
XR = WR + 32768
PT = XR + 3 * 32768
PAIR = int(OPT.get("pair", 1)); PR = 8
LDS = PT + (256 * PR * 8 if PAIR else 0)
QROW = N * 4; OROW = N * 2
L = []
def e(s): L.append("    " + s)
def lab(s): L.append(s + ":")
def c(s): L.append("    ; " + s)
hdr = f"""; Kernarg layout for this problem (56 bytes, ptrs only, base s[0:1]):
; @launch grid=(256,1,1) block=(768,1,1) lds={LDS}
.amdgcn_target "amdgcn-amd-amdhsa--gfx950"
.text
.globl {NAME}
.p2align 8
.type {NAME},@function
{NAME}:
"""
SX, SQ, SA, SO, SC = 16, 20, 24, 28, 32
S_NT, S_MT, S_W, S_RND = 36, 37, 38, 39
S_T0, S_T1, S_T2 = 40, 41, 42
S_QOFF, S_XOFF, S_XM0, S_XSL, S_WSL, S_QOF2, S_O, S_XOF2, S_B = 43, 44, 45, 46, 47, 48, 49, 52, 53
SV = 7
def stamp(idx, v, dyn=None):
    if not STAMP: return
    if STAMP >= 2 and dyn is not None: return
    if dyn is not None: e(f"s_add_u32 s62, s{dyn}, {idx}")
    e("s_memtime s[60:61]")
    e("s_waitcnt lgkmcnt(0)")
    if dyn is not None:
        e("s_mov_b32 s59, m0"); e("s_mov_b32 m0, s62")
        e(f"v_writelane_b32 v{v}, s60, m0")
        e("s_mov_b32 m0, s59")
    else:
        e(f"v_writelane_b32 v{v}, s60, {idx}")
def stamp_out(v, vt):
    if not STAMP: return
    e("s_load_dwordx2 s[64:65], s[0:1], 48")
    e(f"s_mul_i32 s66, s{S_B}, 12")
    e("s_add_u32 s66, s66, s63")
    e("s_lshl_b32 s66, s66, 8")
    e(f"v_lshlrev_b32 v{vt}, 2, v0")
    e(f"v_add_u32 v{vt}, s66, v{vt}")
    e("s_waitcnt lgkmcnt(0)")
    e(f"global_store_dword v{vt}, v{v}, s[64:65]")
def srd(d, p, sz):
    e(f"s_mov_b32 s{d}, s{p}")
    e(f"s_and_b32 s{d+1}, s{p+1}, 0xffff")
    e(f"s_mov_b32 s{d+2}, {sz}")
    e(f"s_mov_b32 s{d+3}, 0x20000")
def srd_hi(d, sz):
    e(f"s_mov_b32 s{d+2}, {sz}")
    e(f"s_mov_b32 s{d+3}, 0x20000")
def srd_lo(d, p):
    e(f"s_mov_b32 s{d}, s{p}")
    e(f"s_and_b32 s{d+1}, s{p+1}, 0xffff")
def xvoff(VX, T):
    e(f"v_lshrrev_b32 v{T}, 4, v0")
    e(f"v_and_b32 v{T+1}, 7, v0")
    e(f"v_xor_b32 v{T+1}, v{T+1}, v{T}")
    e(f"v_lshrrev_b32 v{T}, 3, v0")
    e(f"v_lshlrev_b32 v{T}, 11, v{T}")
    e(f"v_lshl_add_u32 v{VX}, v{T+1}, 4, v{T}")
    e(f"v_xor_b32 v{VX+1}, 64, v{VX}")
    e(f"v_add_u32 v{VX+2}, {2*15360}, v{VX}")
    e(f"v_add_u32 v{VX+3}, {3*15360}, v{VX+1}")
    e(f"v_add_u32 v{VX+1}, {1*15360}, v{VX+1}")

e("s_load_dwordx8 s[4:11], s[0:1], 0")
e("s_load_dwordx2 s[12:13], s[0:1], 32")
if STAMP:
    e("s_memtime s[56:57]")
    e("s_memrealtime s[54:55]")
if CPF:
    c("pull the kernel's own code into this XCD's L2 (threads 0..NL-1 of every workgroup, one line each)")
    e("s_getpc_b64 s[14:15]")
    e("v_lshlrev_b32 v2, 7, v0")
    e("v_cmp_gt_u32 vcc, CODE_LINES, v0")
    e("s_and_saveexec_b64 s[50:51], vcc")
    e("s_cbranch_execz L_nocpf")
    e("global_load_dword v160, v2, s[14:15]")
    lab("L_nocpf")
    e("s_mov_b64 exec, s[50:51]")
e("v_lshrrev_b32 v1, 6, v0")
e("v_and_b32 v0, 63, v0")
e(f"v_readfirstlane_b32 s{S_W}, v1")
e("s_cmp_ge_u32 s2, 256")
e("s_cbranch_scc1 L_end")
e("s_cmp_ge_u32 s2, 32")
e("s_cbranch_scc1 L_comp")
if True:
    e(f"s_cmp_lg_u32 s{S_W}, {0 if HELP else 99}")
    e("s_cbranch_scc1 L_end")
    e("s_lshr_b32 s36, s2, 3")
    e("v_lshlrev_b32 v1, 11, v0")
    if MAP == 0:
        e("s_and_b32 s14, s2, 1")
        e("s_bfe_u32 s15, s2, 0x20001")
        e("s_lshl_b32 s37, s14, 4")
        e("s_lshl_b32 s38, s15, 2")
        e("s_add_u32 s37, s37, s38")
        e("s_add_u32 s37, s37, s36")
        e("s_lshl_b32 s37, s37, 17")
        e("v_lshrrev_b32 v2, 5, v0")
        e(f"v_mul_u32_u24 v2, {QROW}, v2")
        e("v_and_b32 v3, 31, v0")
        e("v_lshl_add_u32 v2, v3, 7, v2")
        e("v_cmp_gt_u32 vcc, 28, v3")
        e("v_mov_b32 v4, 0x7fffffff")
        e("s_lshl_b32 s38, s14, 2")
        e("v_cndmask_b32 v2, v4, v2, vcc")
        e("s_add_u32 s38, s38, s36")
        e("s_lshl_b32 s38, s38, 3")
        e(f"s_add_u32 s38, s38, {64*RB}")
        e(f"s_mul_i32 s38, s38, {QROW}")
        e("s_mul_i32 s39, s15, 3584")
        e("s_add_u32 s38, s38, s39")
        step, last = 2, 58
    else:
        e("s_and_b32 s14, s2, 7")
        e("s_lshl_b32 s37, s14, 2")
        e("s_add_u32 s37, s37, s36")
        e("s_lshl_b32 s37, s37, 17")
        e("v_lshrrev_b32 v2, 4, v0")
        e(f"v_mul_u32_u24 v2, {QROW}, v2")
        e("v_and_b32 v3, 15, v0")
        e("v_lshl_add_u32 v2, v3, 7, v2")
        e("v_cmp_gt_u32 vcc, 14, v3")
        e("v_mov_b32 v4, 0x7fffffff")
        e("s_lshl_b32 s38, s36, 4")
        e("v_cndmask_b32 v2, v4, v2, vcc")
        e(f"s_add_u32 s38, s38, {64*RB}")
        e(f"s_mul_i32 s38, s38, {QROW}")
        e("s_mul_i32 s39, s14, 1792")
        e("s_add_u32 s38, s38, s39")
        step, last = 4, 52
    e("s_waitcnt lgkmcnt(0)")
    srd(SX, 4, M*K*2)
    srd(SQ, 6, K*N*4)
    for r in range(RB):
        e(f"buffer_load_dword v5, v1, s[{SX}:{SX+3}], s37 offen offset:{128*r}")
    e(f"s_add_u32 s37, s37, {128*RB}")
    e(f"s_mov_b32 s40, {16-RB}")
    lab("L_hloop")
    for k in range(4):
        e(f"buffer_load_dword v5, v2, s[{SQ}:{SQ+3}], s38 offen")
        e(f"s_add_u32 s38, s38, {step*QROW if k < 3 else last*QROW}")
    e(f"buffer_load_dword v5, v1, s[{SX}:{SX+3}], s37 offen")
    e("s_add_u32 s37, s37, 128")
    e("s_waitcnt vmcnt(20)")
    e("s_sub_u32 s40, s40, 1")
    e("s_cmp_lg_u32 s40, 0")
    e("s_cbranch_scc1 L_hloop")
e("s_endpgm")
lab("L_comp")
e(f"s_sub_u32 s{S_B}, s2, 32")
if MAP == 0:
    e(f"s_lshr_b32 s15, s{S_B}, 3")
    e(f"s_and_b32 s14, s{S_B}, 1")
    e("s_lshl_b32 s14, s14, 2")
    e(f"s_and_b32 s{S_MT}, s15, 3")
    e(f"s_add_u32 s{S_MT}, s{S_MT}, s14")
    e(f"s_bfe_u32 s14, s{S_B}, 0x20001")
    e("s_mul_i32 s14, s14, 7")
    e(f"s_lshr_b32 s{S_NT}, s15, 2")
    e(f"s_add_u32 s{S_NT}, s{S_NT}, s14")
else:
    e(f"s_and_b32 s14, s{S_B}, 7")
    e("s_mul_i32 s14, s14, 28")
    e(f"s_lshr_b32 s15, s{S_B}, 3")
    e("s_add_u32 s14, s14, s15")
    e(f"s_and_b32 s{S_MT}, s14, 7")
    e(f"s_lshr_b32 s{S_NT}, s14, 3")
if STAMP: e(f"s_mov_b32 s63, s{S_W}")
e(f"s_cmp_lt_u32 s{S_W}, 4")
e("s_cbranch_scc1 L_cons")

lab("L_prod")
VQO = 1; VXO = 5; V_W0, V_W1 = 9, 10; V_SA = 11; V_SR = 12; V_S = 14; V_D = 20; RAW = 36; PSV = 100; T = 104
def q(r, t): return RAW + r * 4 + t
e(f"s_sub_u32 s{S_W}, s{S_W}, 4")
e(f"s_lshr_b32 s{S_T1}, s{S_W}, 2")
e(f"s_cmp_lg_u32 s{S_T1}, 0")
e(f"s_setprio {BPRIO}")
e("s_cbranch_scc1 L_noprio")
e("s_setprio 3")
lab("L_noprio")
e(f"v_and_b32 v{T}, 31, v0")
e(f"v_lshrrev_b32 v{T+1}, 5, v0")
e(f"v_mul_u32_u24 v{VQO}, {8*QROW}, v{T+1}")
e(f"v_lshl_add_u32 v{VQO}, v{T}, 4, v{VQO}")
for r in range(1, 4):
    e(f"v_add_u32 v{VQO+r}, {r*QROW}, v{VQO}")
e(f"v_lshlrev_b32 v{V_SA}, 3, v{T}")
e(f"v_lshlrev_b32 v{T+5}, 1, v0")
e(f"s_mul_i32 s{S_QOFF}, s{S_W}, {16*QROW}")
e(f"s_lshl_b32 s{S_T2}, s{S_NT}, 9")
e(f"s_add_u32 s{S_QOFF}, s{S_QOFF}, s{S_T2}")
e(f"s_lshr_b32 s50, s{S_W}, 1")
e(f"s_mul_i32 s51, s50, {OROW}")
e(f"s_lshl_b32 s{S_T2}, s{S_NT}, 8")
e(f"s_add_u32 s51, s51, s{S_T2}")
srd_hi(SQ, K*N*4); srd_hi(SC, 32); srd_hi(SA, 32*N*2); srd_hi(SX, M*K*2)
if NBURST:
    e(f"s_sub_u32 s58, s{S_W}, 4")
    e(f"s_cmp_ge_u32 s58, {NBURST}")
    e("s_cbranch_scc1 L_noburst")
    e("s_setprio 3")
    e(f"v_bfe_u32 v{T+10}, v0, 2, 3")
    e(f"v_lshl_add_u32 v{T+9}, v{T+1}, 6, v{T+10}")
    e(f"v_mul_u32_u24 v{T+9}, {QROW}, v{T+9}")
    e(f"v_and_b32 v{T+10}, 3, v0")
    e(f"v_lshl_add_u32 v{T+9}, v{T+10}, 7, v{T+9}")
    e("s_lshl_b32 s58, s58, 4")
    e(f"s_add_u32 s58, s58, s{S_MT}")
    e("s_add_u32 s58, s58, 8")
    e(f"s_mul_i32 s58, s58, {8*QROW}")
    e(f"s_lshl_b32 s59, s{S_NT}, 9")
    e("s_add_u32 s58, s58, s59")
    e("s_waitcnt lgkmcnt(0)")
    srd_lo(SQ, 6)
    e(f"buffer_load_dword v{T+10}, v{T+9}, s[{SQ}:{SQ+3}], s58 offen")
    e(f"s_setprio {BPRIO}")
    lab("L_noburst")
e("s_waitcnt lgkmcnt(0)")
srd_lo(SC, 8)
e(f"buffer_load_ushort v{T+6}, v{T+5}, s[{SC}:{SC+3}], 0 offen")
srd_lo(SA, 10)
e(f"buffer_load_dwordx2 v[{V_SR}:{V_SR+1}], v{V_SA}, s[{SA}:{SA+3}], s51 offen")
srd_lo(SQ, 6)
def qload(r):
    b = q(r, 0)
    e(f"buffer_load_dwordx4 v[{b}:{b+3}], v{VQO+(r&3)}, s[{SQ}:{SQ+3}], s{S_QOFF if r < 4 else S_QOF2} offen")
def qloads():
    e(f"s_add_u32 s{S_QOF2}, s{S_QOFF}, {4*QROW}")
    for r in range(8): qload(r)
    e(f"s_add_u32 s{S_QOFF}, s{S_QOFF}, {128*QROW}")
qloads()
if STAMP:
    e(f"v_mov_b32 v{PSV}, 0")
    e(f"v_writelane_b32 v{PSV}, s56, 0")
stamp(1, PSV)
srd_lo(SX, 4)
e(f"s_and_b32 s{S_T0}, s{S_W}, 3")
xvoff(VXO, T + 7)
e(f"s_lshl_b32 s{S_XOFF}, s{S_MT}, 2")
e(f"s_add_u32 s{S_XOFF}, s{S_XOFF}, s{S_T0}")
e(f"s_lshl_b32 s{S_XOFF}, s{S_XOFF}, 17")
e(f"s_lshl_b32 s{S_T2}, s{S_T1}, 7")
e(f"s_sub_u32 s{S_T2}, 256, s{S_T2}")
e(f"s_add_u32 s{S_XOFF}, s{S_XOFF}, s{S_T2}")
e(f"s_lshl_b32 s{S_XM0}, s{S_T0}, 13")
e(f"s_add_u32 s{S_XM0}, s{S_XM0}, {XR}")
e(f"s_lshl_b32 s{S_XSL}, s{S_T2}, 8")
e(f"v_and_b32 v{T+7}, 15, v{T}")
e(f"v_lshrrev_b32 v{T+8}, 4, v{T}")
e(f"v_lshlrev_b32 v{T+8}, 12, v{T+8}")
e(f"v_lshl_add_u32 v{T+8}, v{T+1}, 8, v{T+8}")
e(f"v_lshl_add_u32 v{T+8}, v{T+7}, 4, v{T+8}")
e(f"s_lshl_b32 s{S_T2}, s50, 13")
e(f"s_and_b32 s58, s{S_W}, 1")
e("s_lshl_b32 s58, s58, 9")
e(f"s_add_u32 s{S_T2}, s{S_T2}, s58")
e(f"s_add_u32 s{S_T2}, s{S_T2}, {WR}")
e(f"v_add_u32 v{V_W0}, s{S_T2}, v{T+8}")
e(f"s_lshl_b32 s50, s50, 8")
e(f"s_add_u32 s50, s50, {SCL + 1024}")
e(f"v_add_u32 v{V_SA}, s50, v{V_SA}")
if PAIR:
    e(f"v_and_b32 v18, 7, v0")
    e(f"v_lshlrev_b32 v18, 3, v18")
    e(f"v_add_u32 v18, {PT}, v18")
def xload(d):
    if d == 0:
        e(f"s_add_u32 m0, s{S_XM0}, s{S_XSL}")
        e(f"s_add_u32 s{S_XOF2}, s{S_XOFF}, 65536")
        e(f"s_sub_u32 s{S_XSL}, s{S_XSL}, 32768")
        e(f"s_cselect_b32 s{S_XSL}, {2*32768}, s{S_XSL}")
    if d == 4:
        e("s_add_u32 m0, m0, 4096")
        e(f"s_add_u32 s{S_XOFF}, s{S_XOFF}, 256")
    e(f"buffer_load_dwordx4 v{VXO+(d&3)}, s[{SX}:{SX+3}], s{S_XOFF if d < 4 else S_XOF2} offen offset:{1024*(d&3)} lds")
def wwrite(t):
    if not NOWR:
        e(f"ds_write_b128 v{V_W0}, v[{V_D+4*t}:{V_D+4*t+3}] offset:{1024*t}")
def SL(extra):
    RPB = SB // 4
    for r0 in range(0, 8, RPB):
        rows = range(r0, r0 + RPB)
        e(f"s_waitcnt vmcnt({8 - (r0 + RPB) + extra})")
        if SALT:
            for r in rows:
                for t in range(4):
                    e(f"v_lshlrev_b32 v{q(r,t)}, 2, v{q(r,t)}")
                    k = r * 4 + t - SALT
                    if k >= 0: e(f"ds_read_b32 v{RAW+k}, v{RAW+k} offset:{TBL}")
        else:
            for r in rows:
                for t in range(4): e(f"v_lshlrev_b32 v{q(r,t)}, 2, v{q(r,t)}")
            for r in rows:
                for t in range(4): e(f"ds_read_b32 v{q(r,t)}, v{q(r,t)} offset:{TBL}")
    if SALT:
        for k in range(32 - SALT, 32): e(f"ds_read_b32 v{RAW+k}, v{RAW+k} offset:{TBL}")
V_PB = 18
def SLP():
    for sp in range(4):
        e(f"s_waitcnt vmcnt({6 - 2*sp})")
        for r in (2*sp, 2*sp+1):
            for t in (0, 2): e(f"v_lshl_add_u32 v{q(r,t)}, v{q(r,t)}, 6, v{V_PB}")
        for r in (2*sp, 2*sp+1):
            for t in (0, 2): e(f"v_lshl_add_u32 v{q(r,t)}, v{q(r,t+1)}, 10, v{q(r,t)}")
        for r in (2*sp, 2*sp+1):
            for t in (0, 2): e(f"ds_read_b64 v[{q(r,t)}:{q(r,t)+1}], v{q(r,t)}")
ops = []
ops.append(f"v_lshlrev_b32 v{V_S}, 16, v{V_SR}")
ops.append(f"v_and_b32 v{V_S+1}, 0xffff0000, v{V_SR}")
ops.append(f"v_lshlrev_b32 v{V_S+2}, 16, v{V_SR+1}")
ops.append(f"v_and_b32 v{V_S+3}, 0xffff0000, v{V_SR+1}")
for sp in range(4):
    for r in (2*sp, 2*sp+1):
        for t in range(4): ops.append(f"v_mul_f32 v{q(r,t)}, v{V_S+t}, v{q(r,t)}")
    for t in range(4): ops.append(f"v_cvt_pk_bf16_f32 v{V_D+4*t+sp}, v{q(2*sp,t)}, v{q(2*sp+1,t)}")
def MC1():
    if MCD:
        e(f"s_waitcnt lgkmcnt({4 if PAIR else 8})")
        for k, o in enumerate(ops[:MCD]):
            if k == 40: e("s_waitcnt lgkmcnt(0)")
            e(o)
if BMODE == 1:
    e(f"s_mov_b32 s{S_RND}, 3")
    e(f"s_cmp_lg_u32 s{S_T1}, 0")
    e("s_cbranch_scc1 L_pB")
c("start-up: codebook table, first unit straight through")
e("s_waitcnt vmcnt(9)")
e(f"v_lshlrev_b32 v{T+6}, 16, v{T+6}")
e(f"v_lshlrev_b32 v{T+5}, 2, v0")
e(f"ds_write_b32 v{T+5}, v{T+6} offset:{TBL}")
SL(0)
e("s_waitcnt lgkmcnt(0)")
for o in ops: e(o)
for t in range(4): wwrite(t)
e("s_setprio 0")
if BMODE == 0:
    e(f"s_mov_b32 s{S_RND}, 3")
    e(f"s_cmp_lg_u32 s{S_T1}, 0")
    e("s_cbranch_scc1 L_pB")
if Q2B4: qloads()
e("s_waitcnt lgkmcnt(0)")
stamp(2, PSV)
e("s_barrier")
if not Q2B4: qloads()
e("s_branch L_pD")
lab("L_pB")
if BMODE == 0:
    stamp(2, PSV)
    e("s_barrier")
    stamp(3, PSV, dyn=S_RND)
    for d in range(8): xload(d)
    qloads()
    e("s_waitcnt vmcnt(8)")
    e("s_branch L_Wdone")
else:
    e("s_setprio 0")
    for d in range(XB): xload(d)
    stamp(2, PSV)
    e("s_barrier")
    stamp(3, PSV, dyn=S_RND)
    for d in range(XB, 8): xload(d)
    e(f"s_setprio {DPRIO}")
    SL(8)
    MC1()
    e("s_setprio 0")
    e("s_branch L_pL2")
lab("L_pL")
c("L phase (S_RND = epoch+3)")
stamp(3, PSV, dyn=S_RND)
for d in range(XD, 8): xload(d)
lab("L_pL2")
e("s_waitcnt lgkmcnt(0)")
e(f"s_cmp_gt_u32 s{S_RND}, 15")
e(f"s_cselect_b32 s{SQ+2}, 0, s{SQ+2}")
e(f"s_add_u32 s{S_QOF2}, s{S_QOFF}, {4*QROW}")
pos = MCD
if LPRIO: e(f"s_setprio {LPRIO}")
for r in range(8):
    need = max(4 + 12 * (r // 2 + 1), min(len(ops), QINT)) if QINT else len(ops)
    while pos < need:
        e(ops[pos]); pos += 1
    if r == WMID:
        while pos < len(ops):
            e(ops[pos]); pos += 1
        e(f"s_waitcnt vmcnt({WMID})")
        for t in range(4): wwrite(t)
    qload(r)
e(f"s_add_u32 s{S_QOFF}, s{S_QOFF}, {128*QROW}")
if WMID >= 8:
    e("s_waitcnt vmcnt(8)")
    for t in range(4): wwrite(t)
if LPRIO: e("s_setprio 0")
lab("L_Wdone")
e("s_waitcnt lgkmcnt(0)")
stamp(23, PSV, dyn=S_RND)
e(f"s_add_u32 s{S_RND}, s{S_RND}, 1")
e(f"s_cmp_ge_u32 s{S_RND}, 17")
e("s_barrier")
e("s_cbranch_scc1 L_pend")
lab("L_pD")
c("D phase: shift + lookup")
stamp(3, PSV, dyn=S_RND)
e(f"s_setprio {DPRIO}")
e(f"ds_read_b64 v[{V_SR}:{V_SR+1}], v{V_SA}")
e(f"v_add_u32 v{V_SA}, 1024, v{V_SA}")
if PAIR: SLP()
else: SL(0)
MC1()
e("s_setprio 0")
for d in range(XD): xload(d)
stamp(23, PSV, dyn=S_RND)
e(f"s_add_u32 s{S_RND}, s{S_RND}, 1")
e("s_barrier")
e("s_branch L_pL")
lab("L_pend")
stamp_out(PSV, 1)
e("s_endpgm")

ACC = 8
XF = ACC + 128
WF = XF + 16
V_XB, V_XA, V_WB, V_XL, V_WL, V_O = 1, 2, 3, 4, 5, 6
def acc(i, j): b = ACC + (i * 2 + j) * 16; return f"v[{b}:{b+15}]"
def xf(i): b = XF + 4 * i; return f"v[{b}:{b+3}]"
def wf(bu, j): b = WF + 8 * bu + 4 * j; return f"v[{b}:{b+3}]"
lab("L_cons")
e(f"s_setprio {X0PRIO}")
c("X(0) and the scale table are loaded by the (still idle) consumers")
xvoff(XF, XF + 4)
e(f"s_lshl_b32 s{S_XOFF}, s{S_MT}, 2")
e(f"s_add_u32 s{S_XOFF}, s{S_XOFF}, s{S_W}")
e(f"s_lshl_b32 s{S_XOFF}, s{S_XOFF}, 17")
e(f"s_add_u32 s{S_XOF2}, s{S_XOFF}, 65536")
e(f"s_lshl_b32 s{S_T2}, s{S_W}, 11")
e(f"s_add_u32 m0, s{S_T2}, {SCL}")
srd_hi(SX, M*K*2)
srd_hi(SA, 32*N*2)
e(f"v_lshrrev_b32 v{XF+6}, 4, v0")
e(f"v_mul_u32_u24 v{XF+6}, {OROW}, v{XF+6}")
e(f"v_and_b32 v{XF+7}, 15, v0")
e(f"v_lshl_add_u32 v{XF+6}, v{XF+7}, 4, v{XF+6}")
e(f"v_add_u32 v{XF+7}, {4*OROW - 1024}, v{XF+6}")
e(f"s_mul_i32 s51, s{S_W}, {8*OROW}")
e(f"s_lshl_b32 s{S_T2}, s{S_NT}, 8")
e(f"s_add_u32 s51, s51, s{S_T2}")
e("s_waitcnt lgkmcnt(0)")
srd_lo(SA, 10)
e("s_setprio 3")
if PAIR:
    srd(SC, 8, 32)
    e(f"v_lshrrev_b32 v{WF}, 2, v0")
    e(f"v_lshlrev_b32 v{WF}, 1, v{WF}")
    e(f"s_lshl_b32 s58, s{S_W}, 3")
    e(f"v_mov_b32 v{WF+1}, s58")
    e(f"buffer_load_ushort v{WF+2}, v{WF}, s[{SC}:{SC+3}], 0 offen")
    e(f"buffer_load_dwordx2 v[{WF+4}:{WF+5}], v{WF+1}, s[{SC}:{SC+3}], 0 offen")
e(f"buffer_load_dwordx4 v{XF+6}, s[{SA}:{SA+3}], s51 offen lds")
e(f"buffer_load_dwordx4 v{XF+7}, s[{SA}:{SA+3}], s51 offen offset:1024 lds")
e(f"s_setprio {X0PRIO}")
if PAIR:
    c("pair table: entry (qa + 16 qb) -> (cb[qa], cb[qb]) as f32, 8 replicas; this wave writes qb = 4w..4w+3")
    e(f"s_lshl_b32 s58, s{S_W}, 12")
    e(f"s_add_u32 s58, s58, {PT}")
    e(f"v_lshl_add_u32 v{WF}, v0, 4, s58")
    e("s_waitcnt vmcnt(2)")
    e(f"v_lshlrev_b32 v{WF+8}, 16, v{WF+2}")
    e(f"v_mov_b32 v{WF+10}, v{WF+8}")
    for k in range(4):
        src = WF + 4 + (k >> 1)
        if k & 1: e(f"v_and_b32 v{WF+9}, 0xffff0000, v{src}")
        else: e(f"v_lshlrev_b32 v{WF+9}, 16, v{src}")
        e(f"v_mov_b32 v{WF+11}, v{WF+9}")
        e(f"ds_write_b128 v{WF}, v[{WF+8}:{WF+11}] offset:{1024*k}")
        e("s_nop 1")
e(f"s_lshl_b32 s{S_T2}, s{S_W}, 13")
e(f"s_add_u32 m0, s{S_T2}, {XR}")
srd_lo(SX, 4)
for d in range(8):
    if d == 4: e("s_add_u32 m0, m0, 4096"); e("s_nop 0")
    e(f"buffer_load_dwordx4 v{XF+(d&3)}, s[{SX}:{SX+3}], s{S_XOFF if d < 4 else S_XOF2} offen offset:{1024*(d&3)} lds")
e("s_setprio 0")
if STAMP:
    e(f"v_mov_b32 v{SV}, 0")
    e(f"v_writelane_b32 v{SV}, s56, 0")
e(f"s_lshr_b32 s{S_T0}, s{S_W}, 1")
e(f"s_and_b32 s{S_T1}, s{S_W}, 1")
e("v_and_b32 v8, 15, v0")
e("v_lshrrev_b32 v9, 4, v0")
e("v_lshrrev_b32 v10, 1, v8")
e("v_xor_b32 v10, v10, v9")
e("v_lshlrev_b32 v10, 4, v10")
e(f"v_lshl_add_u32 v{V_XL}, v8, 7, v10")
e(f"s_lshl_b32 s{S_T2}, s{S_T0}, 14")
e(f"s_add_u32 s{S_T2}, s{S_T2}, {XR}")
e(f"v_add_u32 v{V_XL}, s{S_T2}, v{V_XL}")
e(f"s_lshl_b32 s{S_T2}, s{S_T1}, 12")
e(f"s_add_u32 s{S_T2}, s{S_T2}, {WR}")
e(f"v_lshl_add_u32 v{V_WL}, v0, 4, s{S_T2}")
e(f"v_mul_u32_u24 v{V_O}, {4*OROW}, v9")
e(f"v_lshl_add_u32 v{V_O}, v8, 3, v{V_O}")
e(f"s_lshl_b32 s{S_O}, s{S_MT}, 1")
e(f"s_add_u32 s{S_O}, s{S_O}, s{S_T0}")
e(f"s_mul_i32 s{S_O}, s{S_O}, {128*OROW}")
e(f"s_lshl_b32 s{S_T2}, s{S_NT}, 1")
e(f"s_add_u32 s{S_T2}, s{S_T2}, s{S_T1}")
e(f"s_lshl_b32 s{S_T2}, s{S_T2}, 7")
e(f"s_add_u32 s{S_O}, s{S_O}, s{S_T2}")
e(f"v_mov_b32 v{V_XB}, v{V_XL}")
e(f"v_xor_b32 v{V_XA}, 64, v{V_XL}")
e(f"v_mov_b32 v{V_WB}, v{V_WL}")
for r in range(128): e(f"v_mov_b32 v{ACC+r}, 0")
e(f"s_mov_b32 s{S_RND}, 0")
e(f"s_mov_b32 s{S_XSL}, 0")
e(f"s_mov_b32 s{S_WSL}, 0")
srd(SO, 12, M*N*2)
e(f"s_setprio {CPRIO}")
e("s_waitcnt vmcnt(0) lgkmcnt(0)")
stamp(1, SV)
e("s_barrier")
stamp(2, SV)
def acc16(i, j): b = ACC + (i * 4 + j) * 4; return f"v[{b}:{b+3}]"
def xq(i): b = XF + 4 * (i & 3); return f"v[{b}:{b+3}]"
def wq(j): b = WF + 4 * j; return f"v[{b}:{b+3}]"
def rX(i, s): e(f"ds_read_b128 {xq(i)}, v{V_XA if s else V_XB} offset:{i*2048}")
def rW(j, s): e(f"ds_read_b128 {wq(j)}, v{V_WB} offset:{s*8192 + j*1024}")
def mf(i, j): e(f"v_mfma_f32_16x16x32_bf16 {acc16(i,j)}, {xq(i)}, {wq(j)}, {acc16(i,j)}")
rX(0, 0); rX(1, 0)
for j in range(4): rW(j, 0)
lab("L_cloop")
for s in range(2):
    for p in range(4):
        c(f"k32 step {s} pair {p}")
        i0, i1 = 2 * p, 2 * p + 1
        if p == 0:
            e("s_waitcnt lgkmcnt(3)")
            mf(i0, 0); rX(2, s); mf(i1, 0); rX(3, s)
            e("s_waitcnt lgkmcnt(4)")
            mf(i0, 1); mf(i1, 1)
            e("s_waitcnt lgkmcnt(3)")
            mf(i0, 2); mf(i1, 2)
            e("s_waitcnt lgkmcnt(2)")
            mf(i0, 3); mf(i1, 3)
        elif p < 3:
            e("s_waitcnt lgkmcnt(1)")
            mf(i0, 0);
            rX(i0 + 2, s)
            e("s_waitcnt lgkmcnt(1)")
            mf(i1, 0); rX(i1 + 2, s)
            mf(i0, 1); mf(i1, 1)
            if s == 1 and p == 1:
                e(f"s_add_u32 s{S_XSL}, s{S_XSL}, 32768")
                e(f"s_cmp_eq_u32 s{S_XSL}, {3*32768}")
            mf(i0, 2)
            if s == 1 and p == 1:
                e(f"s_cselect_b32 s{S_XSL}, 0, s{S_XSL}")
                e(f"s_xor_b32 s{S_WSL}, s{S_WSL}, 16384")
            if s == 1 and p == 2:
                e(f"v_add_u32 v{V_XB}, s{S_XSL}, v{V_XL}")
                e(f"v_add_u32 v{V_WB}, s{S_WSL}, v{V_WL}")
            mf(i1, 2)
            if s == 1 and p == 2:
                e(f"v_xor_b32 v{V_XA}, 64, v{V_XB}")
                e(f"s_add_u32 s{S_RND}, s{S_RND}, 1")
            mf(i0, 3); mf(i1, 3)
        else:
            ns = s ^ 1
            e("s_waitcnt lgkmcnt(0)")
            if s == 1:
                stamp(3, SV, dyn=S_RND)
                e("s_barrier")
                stamp(23, SV, dyn=S_RND)
            rX(0, ns)
            mf(i0, 0); rX(1, ns); mf(i1, 0); rW(0, ns)
            mf(i0, 1); mf(i1, 1); rW(1, ns)
            if s == 1: e(f"s_cmp_lg_u32 s{S_RND}, {15 if EARLY else 16}")
            mf(i0, 2); mf(i1, 2); rW(2, ns)
            mf(i0, 3); mf(i1, 3); rW(3, ns)
e("s_cbranch_scc1 L_cloop")
if not EARLY:
    c("epilogue")
    e("s_nop 7")
    stamp(20, SV)
    e("s_waitcnt lgkmcnt(0)")
    for t in range(1, 4):
        e(f"v_add_u32 v{XF+t}, {t*OROW}, v{V_O}")
    e(f"v_mov_b32 v{XF}, v{V_O}")
    for i in range(8):
        for r in range(4):
            a = lambda j: ACC + (i * 4 + j) * 4 + r
            d = WF + 2 * r + 8 * (i & 1)
            e(f"v_cvt_pk_bf16_f32 v{d}, v{a(0)}, v{a(1)}")
            e(f"v_cvt_pk_bf16_f32 v{d+1}, v{a(2)}, v{a(3)}")
        for r in range(4):
            d = WF + 2 * r + 8 * (i & 1)
            e(f"buffer_store_dwordx2 v[{d}:{d+1}], v{XF+r}, s[{SO}:{SO+3}], s{S_O} offen {STFLAG}")
        e(f"s_add_u32 s{S_O}, s{S_O}, {16*OROW}")
else:
    c("last round, pair-outer: finished row blocks are converted and stored under the remaining MFMAs")
    stamp(20, SV)
    def out_ops(i):
        base = ACC + i * 16
        A = lambda j, r: base + 4 * j + r
        res = []
        for r in range(4):
            d = (4 if i == 0 else base - 16 + 12) if r == 0 else base + 4 * (r - 1)
            res.append([f"v_cvt_pk_bf16_f32 v{d}, v{A(0,r)}, v{A(1,r)}",
                        f"v_cvt_pk_bf16_f32 v{d+1}, v{A(2,r)}, v{A(3,r)}",
                        f"buffer_store_dwordx2 v[{d}:{d+1}], v{V_O}, s[{SO}:{SO+3}], s{S_O} offen {STFLAG}",
                        f"s_add_u32 s{S_O}, s{S_O}, {OROW if r < 3 else 13*OROW}"])
        return res
    pend = []
    def xq2(g, k): b = XF + 8 * (g & 1) + 4 * k; return f"v[{b}:{b+3}]"
    for g in range(8):
        p, sg = g >> 1, g & 1
        ng = g + 1; np_, ns = ng >> 1, ng & 1
        last = g == 7
        for j in range(4):
            if last: cnt = 3 - j
            else: cnt = 3 if j == 0 else 5
            e(f"s_waitcnt lgkmcnt({cnt})")
            for k in range(2):
                e(f"v_mfma_f32_16x16x32_bf16 {acc16(2*p+k,j)}, {xq2(g,k)}, {wq(j)}, {acc16(2*p+k,j)}")
                if j == 0 and not last:
                    e(f"ds_read_b128 {xq2(ng,k)}, v{V_XA if ns else V_XB} offset:{(2*np_+k)*2048}")
            if not last: rW(j, ns)
            if pend and not (sg == 0 and j == 0):
                for o in pend.pop(0): e(o)
        if sg == 1:
            pend += out_ops(2 * p) + out_ops(2 * p + 1)
    e("s_nop 7")
    for grp_ in pend:
        for o in grp_: e(o)
stamp(21, SV)
if STAMP: e("s_waitcnt vmcnt(0)")
stamp(22, SV)
if STAMP:
    e("s_memrealtime s[60:61]")
    e("s_waitcnt lgkmcnt(0)")
    e(f"v_writelane_b32 v{SV}, s60, 61")
    e(f"v_writelane_b32 v{SV}, s54, 60")
stamp_out(SV, 1)
e("s_endpgm")

lab("L_end")
e("s_endpgm")
tail = f""".section .rodata,"a"
.p2align 6
.amdhsa_kernel {NAME}
  .amdhsa_next_free_vgpr 168
  .amdhsa_next_free_sgpr 80
  .amdhsa_accum_offset 168
  .amdhsa_group_segment_fixed_size 0
  .amdhsa_kernarg_size 56
  .amdhsa_user_sgpr_count 2
  .amdhsa_user_sgpr_kernarg_segment_ptr 1
  .amdhsa_system_sgpr_workgroup_id_x 1
  .amdhsa_float_denorm_mode_32 3
.end_amdhsa_kernel
"""
body = "\n".join(x for x in L if x) + "\n"
body = body.replace("CODE_LINES", str(int(OPT.get("cl", 44))))
open(sys.argv[1], "w").write(hdr + body + tail)
print("LDS", LDS)
```

```python
import sys
NAME = "standalone__normalfloat_lut_codebook_lookup__prompt_kernel"
M, K, N = 2048, 1024, 3584
OPT = dict(a.split("=") for a in sys.argv[2:])
STAMP = int(OPT.get("stamp", 0))
CPRIO = int(OPT.get("cprio", 2)); DPRIO = int(OPT.get("dprio", 1))
STFLAG = OPT.get("st", "nt").replace("_", " ").replace("-", "")
HELP = int(OPT.get("help", 1)); MAP = int(OPT.get("map", 0))
MCD = int(OPT.get("mcd", 40))
NOWR = int(OPT.get("nowr", 0))
NBURST = int(OPT.get("nburst", 0))
RB = 1 + 2 * NBURST
CPF = int(OPT.get("cpf", 0))
WMID = int(OPT.get("wmid", 8)); LPRIO = int(OPT.get("lprio", 0))
EARLY = int(OPT.get("early", 2)); PRE14 = int(OPT.get("pre14", 2)); SDENS = int(OPT.get("sdens", 0)); QSKIP = int(OPT.get("qskip", 1))
SB = int(OPT.get("sb", 8)); SALT = int(OPT.get("salt", 0))
HS = int(OPT.get("hs", 1)); HNOX = int(OPT.get("hnox", 0))
BMODE = int(OPT.get("bmode", 0)); XB = int(OPT.get("xb", 8))
XD = int(OPT.get("xd", 6)); QINT = int(OPT.get("qint", 0))
Q2B4 = int(OPT.get("q2b4", 1)); BPRIO = int(OPT.get("bprio", 2)); X0PRIO = int(OPT.get("x0prio", 1))
TBL = 0
SCL = 256
WR = SCL + 8192
XR = WR + 32768
PT = XR + 3 * 32768
PAIR = int(OPT.get("pair", 1)); PR = 8
LDS = PT + (256 * PR * 8 if PAIR else 0)
QROW = N * 4; OROW = N * 2
L = []
def e(s): L.append("    " + s)
def lab(s): L.append(s + ":")
def c(s): L.append("    ; " + s)
hdr = f"""; Kernarg layout for this problem (56 bytes, ptrs only, base s[0:1]):
; @launch grid=(256,1,1) block=(768,1,1) lds={LDS}
.amdgcn_target "amdgcn-amd-amdhsa--gfx950"
.text
.globl {NAME}
.p2align 8
.type {NAME},@function
{NAME}:
"""
SX, SQ, SA, SO, SC = 16, 20, 24, 28, 32
S_NT, S_MT, S_W, S_RND = 36, 37, 38, 39
S_T0, S_T1, S_T2 = 40, 41, 42
S_QOFF, S_XOFF, S_XM0, S_XSL, S_WSL, S_QOF2, S_O, S_XOF2, S_B = 43, 44, 45, 46, 47, 48, 49, 52, 53
SV = 7
def stamp(idx, v, dyn=None):
    if not STAMP: return
    if STAMP >= 2 and dyn is not None: return
    if dyn is not None: e(f"s_add_u32 s62, s{dyn}, {idx}")
    e("s_memtime s[60:61]")
    e("s_waitcnt lgkmcnt(0)")
    if dyn is not None:
        e("s_mov_b32 s59, m0"); e("s_mov_b32 m0, s62")
        e(f"v_writelane_b32 v{v}, s60, m0")
        e("s_mov_b32 m0, s59")
    else:
        e(f"v_writelane_b32 v{v}, s60, {idx}")
def stamp_out(v, vt):
    if not STAMP: return
    e("s_load_dwordx2 s[64:65], s[0:1], 48")
    e(f"s_mul_i32 s66, s{S_B}, 12")
    e("s_add_u32 s66, s66, s63")
    e("s_lshl_b32 s66, s66, 8")
    e(f"v_lshlrev_b32 v{vt}, 2, v0")
    e(f"v_add_u32 v{vt}, s66, v{vt}")
    e("s_waitcnt lgkmcnt(0)")
    e(f"global_store_dword v{vt}, v{v}, s[64:65]")
def srd(d, p, sz):
    e(f"s_mov_b32 s{d}, s{p}")
    e(f"s_and_b32 s{d+1}, s{p+1}, 0xffff")
    e(f"s_mov_b32 s{d+2}, {sz}")
    e(f"s_mov_b32 s{d+3}, 0x20000")
def srd_hi(d, sz):
    e(f"s_mov_b32 s{d+2}, {sz}")
    e(f"s_mov_b32 s{d+3}, 0x20000")
def srd_lo(d, p):
    e(f"s_mov_b32 s{d}, s{p}")
    e(f"s_and_b32 s{d+1}, s{p+1}, 0xffff")
def xvoff(VX, T):
    e(f"v_lshrrev_b32 v{T}, 4, v0")
    e(f"v_and_b32 v{T+1}, 7, v0")
    e(f"v_xor_b32 v{T+1}, v{T+1}, v{T}")
    e(f"v_lshrrev_b32 v{T}, 3, v0")
    e(f"v_lshlrev_b32 v{T}, 11, v{T}")
    e(f"v_lshl_add_u32 v{VX}, v{T+1}, 4, v{T}")
    e(f"v_xor_b32 v{VX+1}, 64, v{VX}")
    e(f"v_add_u32 v{VX+2}, {2*15360}, v{VX}")
    e(f"v_add_u32 v{VX+3}, {3*15360}, v{VX+1}")
    e(f"v_add_u32 v{VX+1}, {1*15360}, v{VX+1}")

e("s_load_dwordx8 s[4:11], s[0:1], 0")
e("s_load_dwordx2 s[12:13], s[0:1], 32")
if STAMP:
    e("s_memtime s[56:57]")
    e("s_memrealtime s[54:55]")
if CPF:
    c("pull the kernel's own code into this XCD's L2 (threads 0..NL-1 of every workgroup, one line each)")
    e("s_getpc_b64 s[14:15]")
    e("v_lshlrev_b32 v2, 7, v0")
    e("v_cmp_gt_u32 vcc, CODE_LINES, v0")
    e("s_and_saveexec_b64 s[50:51], vcc")
    e("s_cbranch_execz L_nocpf")
    e("global_load_dword v160, v2, s[14:15]")
    lab("L_nocpf")
    e("s_mov_b64 exec, s[50:51]")
e("v_lshrrev_b32 v1, 6, v0")
e("v_and_b32 v0, 63, v0")
e(f"v_readfirstlane_b32 s{S_W}, v1")
e("s_cmp_ge_u32 s2, 256")
e("s_cbranch_scc1 L_end")
e("s_cmp_ge_u32 s2, 32")
e("s_cbranch_scc1 L_comp")
if True:
    e(f"s_cmp_lg_u32 s{S_W}, {0 if HELP else 99}")
    e("s_cbranch_scc1 L_end")
    e("s_lshr_b32 s36, s2, 3")
    e("v_lshlrev_b32 v1, 11, v0")
    if MAP == 0:
        e("s_and_b32 s14, s2, 1")
        e("s_bfe_u32 s15, s2, 0x20001")
        e("s_lshl_b32 s37, s14, 4")
        e("s_lshl_b32 s38, s15, 2")
        e("s_add_u32 s37, s37, s38")
        e("s_add_u32 s37, s37, s36")
        e("s_lshl_b32 s37, s37, 17")
        if HS == 1:
            e("v_lshrrev_b32 v2, 5, v0")
            e(f"v_mul_u32_u24 v2, {QROW}, v2")
            e("v_and_b32 v3, 31, v0")
            e("v_lshl_add_u32 v2, v3, 7, v2")
            e("v_cmp_gt_u32 vcc, 28, v3")
        else:
            e("v_lshrrev_b32 v2, 4, v0")
            e(f"v_mul_u32_u24 v2, {QROW}, v2")
            e("v_and_b32 v3, 15, v0")
            e("v_lshl_add_u32 v2, v3, 8, v2")
            e("v_cmp_gt_u32 vcc, 14, v3")
        e("v_mov_b32 v4, 0x7fffffff")
        e("s_lshl_b32 s38, s14, 2")
        e("v_cndmask_b32 v2, v4, v2, vcc")
        e("s_add_u32 s38, s38, s36")
        e("s_lshl_b32 s38, s38, 3")
        e(f"s_add_u32 s38, s38, {64*RB}")
        e(f"s_mul_i32 s38, s38, {QROW}")
        e("s_mul_i32 s39, s15, 3584")
        e("s_add_u32 s38, s38, s39")
        step, last = (2, 58) if HS == 1 else (4, 60)
    else:
        e("s_and_b32 s14, s2, 7")
        e("s_lshl_b32 s37, s14, 2")
        e("s_add_u32 s37, s37, s36")
        e("s_lshl_b32 s37, s37, 17")
        e("v_lshrrev_b32 v2, 4, v0")
        e(f"v_mul_u32_u24 v2, {QROW}, v2")
        e("v_and_b32 v3, 15, v0")
        e("v_lshl_add_u32 v2, v3, 7, v2")
        e("v_cmp_gt_u32 vcc, 14, v3")
        e("v_mov_b32 v4, 0x7fffffff")
        e("s_lshl_b32 s38, s36, 4")
        e("v_cndmask_b32 v2, v4, v2, vcc")
        e(f"s_add_u32 s38, s38, {64*RB}")
        e(f"s_mul_i32 s38, s38, {QROW}")
        e("s_mul_i32 s39, s14, 1792")
        e("s_add_u32 s38, s38, s39")
        step, last = 4, 52
    e("s_waitcnt lgkmcnt(0)")
    srd(SX, 4, M*K*2)
    srd(SQ, 6, K*N*4)
    for r in range(RB):
        e(f"buffer_load_dword v5, v1, s[{SX}:{SX+3}], s37 offen offset:{128*r}")
    e(f"s_add_u32 s37, s37, {128*RB}")
    e(f"s_mov_b32 s40, {16-RB}")
    lab("L_hloop")
    nq = 4 // HS
    for k in range(nq):
        e(f"buffer_load_dword v5, v2, s[{SQ}:{SQ+3}], s38 offen")
        e(f"s_add_u32 s38, s38, {step*QROW if k < nq - 1 else last*QROW}")
    if not HNOX: e(f"buffer_load_dword v5, v1, s[{SX}:{SX+3}], s37 offen")
    e("s_add_u32 s37, s37, 128")
    e("s_waitcnt vmcnt(20)")
    e("s_sub_u32 s40, s40, 1")
    e("s_cmp_lg_u32 s40, 0")
    e("s_cbranch_scc1 L_hloop")
    if STAMP:
        e("s_waitcnt vmcnt(0)")
        e("s_memtime s[60:61]")
        e("s_load_dwordx2 s[64:65], s[0:1], 48")
        e("s_waitcnt lgkmcnt(0)")
        e("s_sub_u32 s60, s60, s56")
        e("s_lshl_b32 s66, s2, 2")
        e("s_add_u32 s66, s66, 720000")
        e("v_mov_b32 v1, s66")
        e("v_mov_b32 v2, s60")
        e("global_store_dword v1, v2, s[64:65]")
e("s_endpgm")
lab("L_comp")
e(f"s_sub_u32 s{S_B}, s2, 32")
if MAP == 0:
    e(f"s_lshr_b32 s15, s{S_B}, 3")
    e(f"s_and_b32 s14, s{S_B}, 1")
    e("s_lshl_b32 s14, s14, 2")
    e(f"s_and_b32 s{S_MT}, s15, 3")
    e(f"s_add_u32 s{S_MT}, s{S_MT}, s14")
    e(f"s_bfe_u32 s14, s{S_B}, 0x20001")
    e("s_mul_i32 s14, s14, 7")
    e(f"s_lshr_b32 s{S_NT}, s15, 2")
    e(f"s_add_u32 s{S_NT}, s{S_NT}, s14")
else:
    e(f"s_and_b32 s14, s{S_B}, 7")
    e("s_mul_i32 s14, s14, 28")
    e(f"s_lshr_b32 s15, s{S_B}, 3")
    e("s_add_u32 s14, s14, s15")
    e(f"s_and_b32 s{S_MT}, s14, 7")
    e(f"s_lshr_b32 s{S_NT}, s14, 3")
if STAMP: e(f"s_mov_b32 s63, s{S_W}")
e(f"s_cmp_lt_u32 s{S_W}, 4")
e("s_cbranch_scc1 L_cons")

lab("L_prod")
VQO = 1; VXO = 5; V_W0, V_W1 = 9, 10; V_SA = 11; V_SR = 12; V_S = 14; V_D = 20; RAW = 36; PSV = 100; T = 104
def q(r, t): return RAW + r * 4 + t
e(f"s_sub_u32 s{S_W}, s{S_W}, 4")
e(f"s_lshr_b32 s{S_T1}, s{S_W}, 2")
e(f"s_cmp_lg_u32 s{S_T1}, 0")
e(f"s_setprio {BPRIO}")
e("s_cbranch_scc1 L_noprio")
e("s_setprio 3")
lab("L_noprio")
e(f"v_and_b32 v{T}, 31, v0")
e(f"v_lshrrev_b32 v{T+1}, 5, v0")
e(f"v_mul_u32_u24 v{VQO}, {8*QROW}, v{T+1}")
e(f"v_lshl_add_u32 v{VQO}, v{T}, 4, v{VQO}")
for r in range(1, 4):
    e(f"v_add_u32 v{VQO+r}, {r*QROW}, v{VQO}")
e(f"v_lshlrev_b32 v{V_SA}, 3, v{T}")
e(f"v_lshlrev_b32 v{T+5}, 1, v0")
e(f"s_mul_i32 s{S_QOFF}, s{S_W}, {16*QROW}")
e(f"s_lshl_b32 s{S_T2}, s{S_NT}, 9")
e(f"s_add_u32 s{S_QOFF}, s{S_QOFF}, s{S_T2}")
e(f"s_lshr_b32 s50, s{S_W}, 1")
e(f"s_mul_i32 s51, s50, {OROW}")
e(f"s_lshl_b32 s{S_T2}, s{S_NT}, 8")
e(f"s_add_u32 s51, s51, s{S_T2}")
srd_hi(SQ, K*N*4); srd_hi(SC, 32); srd_hi(SA, 32*N*2); srd_hi(SX, M*K*2)
if NBURST:
    e(f"s_sub_u32 s58, s{S_W}, 4")
    e(f"s_cmp_ge_u32 s58, {NBURST}")
    e("s_cbranch_scc1 L_noburst")
    e("s_setprio 3")
    e(f"v_bfe_u32 v{T+10}, v0, 2, 3")
    e(f"v_lshl_add_u32 v{T+9}, v{T+1}, 6, v{T+10}")
    e(f"v_mul_u32_u24 v{T+9}, {QROW}, v{T+9}")
    e(f"v_and_b32 v{T+10}, 3, v0")
    e(f"v_lshl_add_u32 v{T+9}, v{T+10}, 7, v{T+9}")
    e("s_lshl_b32 s58, s58, 4")
    e(f"s_add_u32 s58, s58, s{S_MT}")
    e("s_add_u32 s58, s58, 8")
    e(f"s_mul_i32 s58, s58, {8*QROW}")
    e(f"s_lshl_b32 s59, s{S_NT}, 9")
    e("s_add_u32 s58, s58, s59")
    e("s_waitcnt lgkmcnt(0)")
    srd_lo(SQ, 6)
    e(f"buffer_load_dword v{T+10}, v{T+9}, s[{SQ}:{SQ+3}], s58 offen")
    e(f"s_setprio {BPRIO}")
    lab("L_noburst")
e("s_waitcnt lgkmcnt(0)")
srd_lo(SC, 8)
e(f"buffer_load_ushort v{T+6}, v{T+5}, s[{SC}:{SC+3}], 0 offen")
srd_lo(SA, 10)
e(f"buffer_load_dwordx2 v[{V_SR}:{V_SR+1}], v{V_SA}, s[{SA}:{SA+3}], s51 offen")
srd_lo(SQ, 6)
def qload(r):
    b = q(r, 0)
    e(f"buffer_load_dwordx4 v[{b}:{b+3}], v{VQO+(r&3)}, s[{SQ}:{SQ+3}], s{S_QOFF if r < 4 else S_QOF2} offen")
def qloads():
    e(f"s_add_u32 s{S_QOF2}, s{S_QOFF}, {4*QROW}")
    for r in range(8): qload(r)
    e(f"s_add_u32 s{S_QOFF}, s{S_QOFF}, {128*QROW}")
qloads()
if STAMP:
    e(f"v_mov_b32 v{PSV}, 0")
    e(f"v_writelane_b32 v{PSV}, s56, 0")
stamp(1, PSV)
srd_lo(SX, 4)
e(f"s_and_b32 s{S_T0}, s{S_W}, 3")
xvoff(VXO, T + 7)
e(f"s_lshl_b32 s{S_XOFF}, s{S_MT}, 2")
e(f"s_add_u32 s{S_XOFF}, s{S_XOFF}, s{S_T0}")
e(f"s_lshl_b32 s{S_XOFF}, s{S_XOFF}, 17")
e(f"s_lshl_b32 s{S_T2}, s{S_T1}, 7")
e(f"s_sub_u32 s{S_T2}, 256, s{S_T2}")
e(f"s_add_u32 s{S_XOFF}, s{S_XOFF}, s{S_T2}")
e(f"s_lshl_b32 s{S_XM0}, s{S_T0}, 13")
e(f"s_add_u32 s{S_XM0}, s{S_XM0}, {XR}")
e(f"s_lshl_b32 s{S_XSL}, s{S_T1}, 16")
e(f"v_and_b32 v{T+7}, 15, v{T}")
e(f"v_lshrrev_b32 v{T+8}, 4, v{T}")
e(f"v_lshlrev_b32 v{T+8}, 12, v{T+8}")
e(f"v_lshl_add_u32 v{T+8}, v{T+1}, 8, v{T+8}")
e(f"v_lshl_add_u32 v{T+8}, v{T+7}, 4, v{T+8}")
e(f"s_lshl_b32 s{S_T2}, s50, 13")
e(f"s_and_b32 s58, s{S_W}, 1")
e("s_lshl_b32 s58, s58, 9")
e(f"s_add_u32 s{S_T2}, s{S_T2}, s58")
e(f"s_add_u32 s{S_T2}, s{S_T2}, {WR}")
e(f"v_add_u32 v{V_W0}, s{S_T2}, v{T+8}")
e(f"s_lshl_b32 s50, s50, 8")
e(f"s_add_u32 s50, s50, {SCL + 1024}")
e(f"v_add_u32 v{V_SA}, s50, v{V_SA}")
if PAIR:
    e(f"v_and_b32 v18, 7, v0")
    e(f"v_lshlrev_b32 v18, 3, v18")
    e(f"v_add_u32 v18, {PT}, v18")
def xload(d):
    if d == 0:
        e(f"s_add_u32 m0, s{S_XM0}, s{S_XSL}")
        e(f"s_add_u32 s{S_XOF2}, s{S_XOFF}, 65536")
        e(f"s_sub_u32 s{S_XSL}, s{S_XSL}, 32768")
        e(f"s_cselect_b32 s{S_XSL}, {2*32768}, s{S_XSL}")
    if d == 4:
        e("s_add_u32 m0, m0, 4096")
        e(f"s_add_u32 s{S_XOFF}, s{S_XOFF}, 256")
    e(f"buffer_load_dwordx4 v{VXO+(d&3)}, s[{SX}:{SX+3}], s{S_XOFF if d < 4 else S_XOF2} offen offset:{1024*(d&3)} lds")
def wwrite(t):
    if not NOWR:
        e(f"ds_write_b128 v{V_W0}, v[{V_D+4*t}:{V_D+4*t+3}] offset:{1024*t}")
def SL(extra):
    RPB = SB // 4
    for r0 in range(0, 8, RPB):
        rows = range(r0, r0 + RPB)
        e(f"s_waitcnt vmcnt({8 - (r0 + RPB) + extra})")
        if SALT:
            for r in rows:
                for t in range(4):
                    e(f"v_lshlrev_b32 v{q(r,t)}, 2, v{q(r,t)}")
                    k = r * 4 + t - SALT
                    if k >= 0: e(f"ds_read_b32 v{RAW+k}, v{RAW+k} offset:{TBL}")
        else:
            for r in rows:
                for t in range(4): e(f"v_lshlrev_b32 v{q(r,t)}, 2, v{q(r,t)}")
            for r in rows:
                for t in range(4): e(f"ds_read_b32 v{q(r,t)}, v{q(r,t)} offset:{TBL}")
    if SALT:
        for k in range(32 - SALT, 32): e(f"ds_read_b32 v{RAW+k}, v{RAW+k} offset:{TBL}")
V_PB = 18
def SLP():
    for sp in range(4):
        e(f"s_waitcnt vmcnt({6 - 2*sp})")
        for r in (2*sp, 2*sp+1):
            for t in (0, 2): e(f"v_lshl_add_u32 v{q(r,t)}, v{q(r,t)}, 6, v{V_PB}")
        for r in (2*sp, 2*sp+1):
            for t in (0, 2): e(f"v_lshl_add_u32 v{q(r,t)}, v{q(r,t+1)}, 10, v{q(r,t)}")
        for r in (2*sp, 2*sp+1):
            for t in (0, 2): e(f"ds_read_b64 v[{q(r,t)}:{q(r,t)+1}], v{q(r,t)}")
ops = []
ops.append(f"v_lshlrev_b32 v{V_S}, 16, v{V_SR}")
ops.append(f"v_and_b32 v{V_S+1}, 0xffff0000, v{V_SR}")
ops.append(f"v_lshlrev_b32 v{V_S+2}, 16, v{V_SR+1}")
ops.append(f"v_and_b32 v{V_S+3}, 0xffff0000, v{V_SR+1}")
for sp in range(4):
    for r in (2*sp, 2*sp+1):
        for t in range(4): ops.append(f"v_mul_f32 v{q(r,t)}, v{V_S+t}, v{q(r,t)}")
    for t in range(4): ops.append(f"v_cvt_pk_bf16_f32 v{V_D+4*t+sp}, v{q(2*sp,t)}, v{q(2*sp+1,t)}")
def MC1():
    if MCD:
        e(f"s_waitcnt lgkmcnt({4 if PAIR else 8})")
        for k, o in enumerate(ops[:MCD]):
            if k == 40: e("s_waitcnt lgkmcnt(0)")
            e(o)
if BMODE == 1:
    e(f"s_mov_b32 s{S_RND}, 3")
    e(f"s_cmp_lg_u32 s{S_T1}, 0")
    e("s_cbranch_scc1 L_pB")
c("start-up: codebook table, first unit straight through")
e("s_waitcnt vmcnt(9)")
e(f"v_lshlrev_b32 v{T+6}, 16, v{T+6}")
e(f"v_lshlrev_b32 v{T+5}, 2, v0")
e(f"ds_write_b32 v{T+5}, v{T+6} offset:{TBL}")
SL(0)
e("s_waitcnt lgkmcnt(0)")
for o in ops: e(o)
for t in range(4): wwrite(t)
e("s_setprio 0")
if BMODE == 0:
    e(f"s_mov_b32 s{S_RND}, 3")
    e(f"s_cmp_lg_u32 s{S_T1}, 0")
    e("s_cbranch_scc1 L_pB")
if Q2B4: qloads()
e("s_waitcnt lgkmcnt(0)")
stamp(2, PSV)
e("s_barrier")
if not Q2B4: qloads()
e("s_branch L_pD")
lab("L_pB")
if BMODE == 0:
    stamp(2, PSV)
    e("s_barrier")
    stamp(3, PSV, dyn=S_RND)
    for d in range(8): xload(d)
    qloads()
    e("s_waitcnt vmcnt(8)")
    e("s_branch L_Wdone")
else:
    e("s_setprio 0")
    for d in range(XB): xload(d)
    stamp(2, PSV)
    e("s_barrier")
    stamp(3, PSV, dyn=S_RND)
    for d in range(XB, 8): xload(d)
    e(f"s_setprio {DPRIO}")
    SL(8)
    MC1()
    e("s_setprio 0")
    e("s_branch L_pL2")
lab("L_pL")
c("L phase (S_RND = epoch+3)")
stamp(3, PSV, dyn=S_RND)
for d in range(XD, 8): xload(d)
lab("L_pL2")
e("s_waitcnt lgkmcnt(0)")
if QSKIP:
    assert QINT == 0 and WMID == 8
    for o in ops[MCD:]: e(o)
    e(f"s_cmp_gt_u32 s{S_RND}, 15")
    e("s_cbranch_scc0 L_doQ")
    e("s_waitcnt vmcnt(0)")
    e("s_branch L_doW")
    lab("L_doQ")
else:
    e(f"s_cmp_gt_u32 s{S_RND}, 15")
    e(f"s_cselect_b32 s{SQ+2}, 0, s{SQ+2}")
e(f"s_add_u32 s{S_QOF2}, s{S_QOFF}, {4*QROW}")
pos = len(ops) if QSKIP else MCD
if LPRIO: e(f"s_setprio {LPRIO}")
for r in range(8):
    need = max(4 + 12 * (r // 2 + 1), min(len(ops), QINT)) if QINT else len(ops)
    while pos < need:
        e(ops[pos]); pos += 1
    if r == WMID:
        while pos < len(ops):
            e(ops[pos]); pos += 1
        e(f"s_waitcnt vmcnt({WMID})")
        for t in range(4): wwrite(t)
    qload(r)
e(f"s_add_u32 s{S_QOFF}, s{S_QOFF}, {128*QROW}")
if WMID >= 8:
    e("s_waitcnt vmcnt(8)")
    lab("L_doW")
    for t in range(4): wwrite(t)
if LPRIO: e("s_setprio 0")
lab("L_Wdone")
e("s_waitcnt lgkmcnt(0)")
stamp(23, PSV, dyn=S_RND)
e(f"s_add_u32 s{S_RND}, s{S_RND}, 1")
e(f"s_cmp_ge_u32 s{S_RND}, 17")
e("s_barrier")
e("s_cbranch_scc1 L_pend")
lab("L_pD")
c("D phase: shift + lookup")
stamp(3, PSV, dyn=S_RND)
e(f"s_setprio {DPRIO}")
e(f"ds_read_b64 v[{V_SR}:{V_SR+1}], v{V_SA}")
e(f"v_add_u32 v{V_SA}, 1024, v{V_SA}")
if PAIR: SLP()
else: SL(0)
MC1()
e("s_setprio 0")
for d in range(XD): xload(d)
stamp(23, PSV, dyn=S_RND)
e(f"s_add_u32 s{S_RND}, s{S_RND}, 1")
e("s_barrier")
e("s_branch L_pL")
lab("L_pend")
stamp_out(PSV, 1)
e("s_endpgm")

ACC = 8
XF = ACC + 128
WF = XF + 16
V_XB, V_XA, V_WB, V_XL, V_WL, V_O = 1, 2, 3, 4, 5, 6
def acc(i, j): b = ACC + (i * 2 + j) * 16; return f"v[{b}:{b+15}]"
def xf(i): b = XF + 4 * i; return f"v[{b}:{b+3}]"
def wf(bu, j): b = WF + 8 * bu + 4 * j; return f"v[{b}:{b+3}]"
lab("L_cons")
e(f"s_setprio {X0PRIO}")
c("X(0) and the scale table are loaded by the (still idle) consumers")
xvoff(XF, XF + 4)
e(f"s_lshl_b32 s{S_XOFF}, s{S_MT}, 2")
e(f"s_add_u32 s{S_XOFF}, s{S_XOFF}, s{S_W}")
e(f"s_lshl_b32 s{S_XOFF}, s{S_XOFF}, 17")
e(f"s_add_u32 s{S_XOF2}, s{S_XOFF}, 65536")
e(f"s_lshl_b32 s{S_T2}, s{S_W}, 11")
e(f"s_add_u32 m0, s{S_T2}, {SCL}")
srd_hi(SX, M*K*2)
srd_hi(SA, 32*N*2)
e(f"v_lshrrev_b32 v{XF+6}, 4, v0")
e(f"v_mul_u32_u24 v{XF+6}, {OROW}, v{XF+6}")
e(f"v_and_b32 v{XF+7}, 15, v0")
e(f"v_lshl_add_u32 v{XF+6}, v{XF+7}, 4, v{XF+6}")
e(f"v_add_u32 v{XF+7}, {4*OROW - 1024}, v{XF+6}")
e(f"s_mul_i32 s51, s{S_W}, {8*OROW}")
e(f"s_lshl_b32 s{S_T2}, s{S_NT}, 8")
e(f"s_add_u32 s51, s51, s{S_T2}")
e("s_waitcnt lgkmcnt(0)")
srd_lo(SA, 10)
e("s_setprio 3")
if PAIR:
    srd(SC, 8, 32)
    e(f"v_lshrrev_b32 v{WF}, 2, v0")
    e(f"v_lshlrev_b32 v{WF}, 1, v{WF}")
    e(f"s_lshl_b32 s58, s{S_W}, 3")
    e(f"v_mov_b32 v{WF+1}, s58")
    e(f"buffer_load_ushort v{WF+2}, v{WF}, s[{SC}:{SC+3}], 0 offen")
    e(f"buffer_load_dwordx2 v[{WF+4}:{WF+5}], v{WF+1}, s[{SC}:{SC+3}], 0 offen")
e(f"buffer_load_dwordx4 v{XF+6}, s[{SA}:{SA+3}], s51 offen lds")
e(f"buffer_load_dwordx4 v{XF+7}, s[{SA}:{SA+3}], s51 offen offset:1024 lds")
e(f"s_setprio {X0PRIO}")
if PAIR:
    c("pair table: entry (qa + 16 qb) -> (cb[qa], cb[qb]) as f32, 8 replicas; this wave writes qb = 4w..4w+3")
    e(f"s_lshl_b32 s58, s{S_W}, 12")
    e(f"s_add_u32 s58, s58, {PT}")
    e(f"v_lshl_add_u32 v{WF}, v0, 4, s58")
    e("s_waitcnt vmcnt(2)")
    e(f"v_lshlrev_b32 v{WF+8}, 16, v{WF+2}")
    e(f"v_mov_b32 v{WF+10}, v{WF+8}")
    for k in range(4):
        src = WF + 4 + (k >> 1)
        if k & 1: e(f"v_and_b32 v{WF+9}, 0xffff0000, v{src}")
        else: e(f"v_lshlrev_b32 v{WF+9}, 16, v{src}")
        e(f"v_mov_b32 v{WF+11}, v{WF+9}")
        e(f"ds_write_b128 v{WF}, v[{WF+8}:{WF+11}] offset:{1024*k}")
        e("s_nop 1")
e(f"s_lshl_b32 s{S_T2}, s{S_W}, 13")
e(f"s_add_u32 m0, s{S_T2}, {XR + 32768}")
srd_lo(SX, 4)
for d in range(8):
    if d == 4: e("s_add_u32 m0, m0, 4096"); e("s_nop 0")
    e(f"buffer_load_dwordx4 v{XF+(d&3)}, s[{SX}:{SX+3}], s{S_XOFF if d < 4 else S_XOF2} offen offset:{1024*(d&3)} lds")
e("s_setprio 0")
if STAMP:
    e(f"v_mov_b32 v{SV}, 0")
    e(f"v_writelane_b32 v{SV}, s56, 0")
e(f"s_lshr_b32 s{S_T0}, s{S_W}, 1")
e(f"s_and_b32 s{S_T1}, s{S_W}, 1")
e("v_and_b32 v8, 15, v0")
e("v_lshrrev_b32 v9, 4, v0")
e("v_lshrrev_b32 v10, 1, v8")
e("v_xor_b32 v10, v10, v9")
e("v_lshlrev_b32 v10, 4, v10")
e(f"v_lshl_add_u32 v{V_XL}, v8, 7, v10")
e(f"s_lshl_b32 s{S_T2}, s{S_T0}, 14")
e(f"s_add_u32 s{S_T2}, s{S_T2}, {XR}")
e(f"v_add_u32 v{V_XL}, s{S_T2}, v{V_XL}")
e(f"s_lshl_b32 s{S_T2}, s{S_T1}, 12")
e(f"s_add_u32 s{S_T2}, s{S_T2}, {WR}")
e(f"v_lshl_add_u32 v{V_WL}, v0, 4, s{S_T2}")
e(f"v_mul_u32_u24 v{V_O}, {4*OROW}, v9")
e(f"v_lshl_add_u32 v{V_O}, v8, 3, v{V_O}")
e(f"s_lshl_b32 s{S_O}, s{S_MT}, 1")
e(f"s_add_u32 s{S_O}, s{S_O}, s{S_T0}")
e(f"s_mul_i32 s{S_O}, s{S_O}, {128*OROW}")
e(f"s_lshl_b32 s{S_T2}, s{S_NT}, 1")
e(f"s_add_u32 s{S_T2}, s{S_T2}, s{S_T1}")
e(f"s_lshl_b32 s{S_T2}, s{S_T2}, 7")
e(f"s_add_u32 s{S_O}, s{S_O}, s{S_T2}")
e(f"v_add_u32 v{V_XB}, 32768, v{V_XL}")
e(f"v_xor_b32 v{V_XA}, 64, v{V_XB}")
e(f"v_mov_b32 v{V_WB}, v{V_WL}")
for r in range(128): e(f"v_mov_b32 v{ACC+r}, 0")
e(f"s_mov_b32 s{S_RND}, 0")
e(f"s_mov_b32 s{S_XSL}, 32768")
e(f"s_mov_b32 s{S_WSL}, 0")
srd(SO, 12, M*N*2)
e(f"s_setprio {CPRIO}")
e("s_waitcnt vmcnt(0) lgkmcnt(0)")
stamp(1, SV)
e("s_barrier")
stamp(2, SV)
def acc16(i, j): b = ACC + (i * 4 + j) * 4; return f"v[{b}:{b+3}]"
def xq(i): b = XF + 4 * (i & 3); return f"v[{b}:{b+3}]"
def wq(j): b = WF + 4 * j; return f"v[{b}:{b+3}]"
def rX(i, s): e(f"ds_read_b128 {xq(i)}, v{V_XA if s else V_XB} offset:{i*2048}")
def rW(j, s): e(f"ds_read_b128 {wq(j)}, v{V_WB} offset:{s*8192 + j*1024}")
def mf(i, j): e(f"v_mfma_f32_16x16x32_bf16 {acc16(i,j)}, {xq(i)}, {wq(j)}, {acc16(i,j)}")
rX(0, 0); rX(1, 0)
for j in range(4): rW(j, 0)
lab("L_cloop")
for s in range(2):
    for p in range(4):
        c(f"k32 step {s} pair {p}")
        i0, i1 = 2 * p, 2 * p + 1
        if p == 0:
            e("s_waitcnt lgkmcnt(3)")
            mf(i0, 0); rX(2, s); mf(i1, 0); rX(3, s)
            e("s_waitcnt lgkmcnt(4)")
            mf(i0, 1); mf(i1, 1)
            e("s_waitcnt lgkmcnt(3)")
            mf(i0, 2); mf(i1, 2)
            e("s_waitcnt lgkmcnt(2)")
            mf(i0, 3); mf(i1, 3)
        elif p < 3:
            e("s_waitcnt lgkmcnt(1)")
            mf(i0, 0);
            rX(i0 + 2, s)
            e("s_waitcnt lgkmcnt(1)")
            mf(i1, 0); rX(i1 + 2, s)
            mf(i0, 1); mf(i1, 1)
            if s == 1 and p == 1:
                e(f"s_add_u32 s{S_XSL}, s{S_XSL}, 32768")
                e(f"s_cmp_eq_u32 s{S_XSL}, {3*32768}")
            mf(i0, 2)
            if s == 1 and p == 1:
                e(f"s_cselect_b32 s{S_XSL}, 0, s{S_XSL}")
                e(f"s_xor_b32 s{S_WSL}, s{S_WSL}, 16384")
            if s == 1 and p == 2:
                e(f"v_add_u32 v{V_XB}, s{S_XSL}, v{V_XL}")
                e(f"v_add_u32 v{V_WB}, s{S_WSL}, v{V_WL}")
            mf(i1, 2)
            if s == 1 and p == 2:
                e(f"v_xor_b32 v{V_XA}, 64, v{V_XB}")
                e(f"s_add_u32 s{S_RND}, s{S_RND}, 1")
            mf(i0, 3); mf(i1, 3)
        else:
            ns = s ^ 1
            e("s_waitcnt lgkmcnt(0)")
            if s == 1:
                stamp(3, SV, dyn=S_RND)
                e("s_barrier")
                stamp(23, SV, dyn=S_RND)
            rX(0, ns)
            mf(i0, 0); rX(1, ns); mf(i1, 0); rW(0, ns)
            mf(i0, 1); mf(i1, 1); rW(1, ns)
            if s == 1: e(f"s_cmp_lg_u32 s{S_RND}, {16 - EARLY}")
            mf(i0, 2); mf(i1, 2); rW(2, ns)
            mf(i0, 3); mf(i1, 3); rW(3, ns)
e("s_cbranch_scc1 L_cloop")
if not EARLY:
    c("epilogue")
    e("s_nop 7")
    stamp(20, SV)
    e("s_waitcnt lgkmcnt(0)")
    for t in range(1, 4):
        e(f"v_add_u32 v{XF+t}, {t*OROW}, v{V_O}")
    e(f"v_mov_b32 v{XF}, v{V_O}")
    for i in range(8):
        for r in range(4):
            a = lambda j: ACC + (i * 4 + j) * 4 + r
            d = WF + 2 * r + 8 * (i & 1)
            e(f"v_cvt_pk_bf16_f32 v{d}, v{a(0)}, v{a(1)}")
            e(f"v_cvt_pk_bf16_f32 v{d+1}, v{a(2)}, v{a(3)}")
        for r in range(4):
            d = WF + 2 * r + 8 * (i & 1)
            e(f"buffer_store_dwordx2 v[{d}:{d+1}], v{XF+r}, s[{SO}:{SO+3}], s{S_O} offen {STFLAG}")
        e(f"s_add_u32 s{S_O}, s{S_O}, {16*OROW}")
else:
    c("last round, pair-outer: finished row blocks are converted and stored under the remaining MFMAs")
    stamp(20, SV)
    def out_ops(i):
        base = ACC + i * 16
        A = lambda j, r: base + 4 * j + r
        res = []
        for r in range(4):
            d = (4 if i == 0 else base - 16 + 12) if r == 0 else base + 4 * (r - 1)
            res.append([f"v_cvt_pk_bf16_f32 v{d}, v{A(0,r)}, v{A(1,r)}",
                        f"v_cvt_pk_bf16_f32 v{d+1}, v{A(2,r)}, v{A(3,r)}",
                        f"buffer_store_dwordx2 v[{d}:{d+1}], v{V_O}, s[{SO}:{SO+3}], s{S_O} offen {STFLAG}",
                        f"s_add_u32 s{S_O}, s{S_O}, {OROW if r < 3 else 13*OROW}"])
        return res
    pend = []
    def xq2(g, k): b = XF + 8 * (g & 1) + 4 * k; return f"v[{b}:{b+3}]"
    if EARLY == 1:
        G = [(p, 0, sg) for p in range(4) for sg in range(2)]; BARG = None; fin = 0
    else:
        seq = [(p, 0) for p in range(PRE14)] + [(p, 1) for p in range(PRE14)]
        for p in range(PRE14, 4): seq += [(p, 0), (p, 1)]
        G = [(p, rr, sg) for (p, rr) in seq for sg in range(2)]; BARG = 2 * PRE14 - 1; fin = 1
    fresh = False
    for g, (p, rr, sg) in enumerate(G):
        last = g == len(G) - 1
        if not last: np_, nr, ns = G[g + 1]
        if g == BARG:
            e("s_barrier")
        for j in range(4):
            if last: cnt = 3 - j
            else: cnt = 3 if j == 0 else 5
            e(f"s_waitcnt lgkmcnt({cnt})")
            for k in range(2):
                e(f"v_mfma_f32_16x16x32_bf16 {acc16(2*p+k,j)}, {xq2(g,k)}, {wq(j)}, {acc16(2*p+k,j)}")
                if j == 0 and not last:
                    e(f"ds_read_b128 {xq2(g+1,k)}, v{V_XA if ns else V_XB} offset:{(2*np_+k)*2048 + 32768*nr}")
            if not last: e(f"ds_read_b128 {wq(j)}, v{V_WB} offset:{ns*8192 + j*1024 + 16384*nr}")
            if pend and not (fresh and j == 0) and (EARLY == 1 or SDENS == 1 or j % 2 == 1 or len(pend) > 8):
                for o in pend.pop(0): e(o)
        fresh = False
        if sg == 1 and rr == fin:
            pend += out_ops(2 * p) + out_ops(2 * p + 1); fresh = True
    e("s_nop 7")
    for grp_ in pend:
        for o in grp_: e(o)
stamp(21, SV)
if STAMP: e("s_waitcnt vmcnt(0)")
stamp(22, SV)
if STAMP:
    e("s_memrealtime s[60:61]")
    e("s_waitcnt lgkmcnt(0)")
    e(f"v_writelane_b32 v{SV}, s60, 61")
    e(f"v_writelane_b32 v{SV}, s54, 60")
stamp_out(SV, 1)
e("s_endpgm")

lab("L_end")
e("s_endpgm")
tail = f""".section .rodata,"a"
.p2align 6
.amdhsa_kernel {NAME}
  .amdhsa_next_free_vgpr 168
  .amdhsa_next_free_sgpr 80
  .amdhsa_accum_offset 168
  .amdhsa_group_segment_fixed_size 0
  .amdhsa_kernarg_size 56
  .amdhsa_user_sgpr_count 2
  .amdhsa_user_sgpr_kernarg_segment_ptr 1
  .amdhsa_system_sgpr_workgroup_id_x 1
  .amdhsa_float_denorm_mode_32 3
.end_amdhsa_kernel
"""
body = "\n".join(x for x in L if x) + "\n"
body = body.replace("CODE_LINES", str(int(OPT.get("cl", 44))))
open(sys.argv[1], "w").write(hdr + body + tail)
print("LDS", LDS)
```

```python
import sys
NAME = "standalone__normalfloat_lut_codebook_lookup__prompt_kernel"
M, K, N = 2048, 1024, 3584
OPT = dict(a.split("=") for a in sys.argv[2:])
STAMP = int(OPT.get("stamp", 0))
CPRIO = int(OPT.get("cprio", 2)); DPRIO = int(OPT.get("dprio", 1))
STFLAG = OPT.get("st", "nt").replace("_", " ").replace("-", "")
HELP = int(OPT.get("help", 1)); MAP = int(OPT.get("map", 0))
MCD = int(OPT.get("mcd", 40))
NOWR = int(OPT.get("nowr", 0))
NBURST = int(OPT.get("nburst", 0))
RB = 1 + 2 * NBURST
CPF = int(OPT.get("cpf", 0))
WMID = int(OPT.get("wmid", 8)); LPRIO = int(OPT.get("lprio", 0))
EARLY = int(OPT.get("early", 2)); PRE14 = int(OPT.get("pre14", 2)); SDENS = int(OPT.get("sdens", 1)); QSKIP = int(OPT.get("qskip", 1))
SB = int(OPT.get("sb", 8)); SALT = int(OPT.get("salt", 0))
HS = int(OPT.get("hs", 1)); HNOX = int(OPT.get("hnox", 0))
BMC = int(OPT.get("bmc", 0))
HSM = int(OPT.get("hsm", 0))
TORD = int(OPT.get("tord", 3))
TB = int(OPT.get("tb", 1)); AL = int(OPT.get("al", 0))
BMODE = int(OPT.get("bmode", 0)); XB = int(OPT.get("xb", 8))
XD = int(OPT.get("xd", 6)); QINT = int(OPT.get("qint", 0))
Q2B4 = int(OPT.get("q2b4", 1)); BPRIO = int(OPT.get("bprio", 2)); X0PRIO = int(OPT.get("x0prio", 1))
TBL = 0
SCL = 256
WR = SCL + 8192
XR = WR + 32768
PT = XR + 3 * 32768
PAIR = int(OPT.get("pair", 1)); PR = 8
LDS = PT + (256 * PR * 8 if PAIR else 0)
QROW = N * 4; OROW = N * 2
L = []
def e(s): L.append("    " + s)
def lab(s): L.append(s + ":")
def c(s): L.append("    ; " + s)
hdr = f"""; Kernarg layout for this problem (56 bytes, ptrs only, base s[0:1]):
; @launch grid=(256,1,1) block=(768,1,1) lds={LDS}
.amdgcn_target "amdgcn-amd-amdhsa--gfx950"
.text
.globl {NAME}
.p2align 8
.type {NAME},@function
{NAME}:
"""
SX, SQ, SA, SO, SC = 16, 20, 24, 28, 32
S_NT, S_MT, S_W, S_RND = 36, 37, 38, 39
S_T0, S_T1, S_T2 = 40, 41, 42
S_QOFF, S_XOFF, S_XM0, S_XSL, S_WSL, S_QOF2, S_O, S_XOF2, S_B = 43, 44, 45, 46, 47, 48, 49, 52, 53
SV = 7
def stamp(idx, v, dyn=None):
    if not STAMP: return
    if STAMP >= 2 and dyn is not None: return
    if dyn is not None: e(f"s_add_u32 s62, s{dyn}, {idx}")
    e("s_memtime s[60:61]")
    e("s_waitcnt lgkmcnt(0)")
    if dyn is not None:
        e("s_mov_b32 s59, m0"); e("s_mov_b32 m0, s62")
        e(f"v_writelane_b32 v{v}, s60, m0")
        e("s_mov_b32 m0, s59")
    else:
        e(f"v_writelane_b32 v{v}, s60, {idx}")
def stamp_out(v, vt):
    if not STAMP: return
    e("s_load_dwordx2 s[64:65], s[0:1], 48")
    e(f"s_mul_i32 s66, s{S_B}, 12")
    e("s_add_u32 s66, s66, s63")
    e("s_lshl_b32 s66, s66, 8")
    e(f"v_lshlrev_b32 v{vt}, 2, v0")
    e(f"v_add_u32 v{vt}, s66, v{vt}")
    e("s_waitcnt lgkmcnt(0)")
    e(f"global_store_dword v{vt}, v{v}, s[64:65]")
def srd(d, p, sz):
    e(f"s_mov_b32 s{d}, s{p}")
    e(f"s_and_b32 s{d+1}, s{p+1}, 0xffff")
    e(f"s_mov_b32 s{d+2}, {sz}")
    e(f"s_mov_b32 s{d+3}, 0x20000")
def srd_hi(d, sz):
    e(f"s_mov_b32 s{d+2}, {sz}")
    e(f"s_mov_b32 s{d+3}, 0x20000")
def srd_lo(d, p):
    e(f"s_mov_b32 s{d}, s{p}")
    e(f"s_and_b32 s{d+1}, s{p+1}, 0xffff")
def xvoff(VX, T):
    e(f"v_lshrrev_b32 v{T}, 4, v0")
    e(f"v_and_b32 v{T+1}, 7, v0")
    e(f"v_xor_b32 v{T+1}, v{T+1}, v{T}")
    e(f"v_lshrrev_b32 v{T}, 3, v0")
    e(f"v_lshlrev_b32 v{T}, 11, v{T}")
    e(f"v_lshl_add_u32 v{VX}, v{T+1}, 4, v{T}")
    e(f"v_xor_b32 v{VX+1}, 64, v{VX}")
    e(f"v_add_u32 v{VX+2}, {2*15360}, v{VX}")
    e(f"v_add_u32 v{VX+3}, {3*15360}, v{VX+1}")
    e(f"v_add_u32 v{VX+1}, {1*15360}, v{VX+1}")

e("s_load_dwordx8 s[4:11], s[0:1], 0")
e("s_load_dwordx2 s[12:13], s[0:1], 32")
if STAMP:
    e("s_memtime s[56:57]")
    e("s_memrealtime s[54:55]")
if CPF:
    c("pull the kernel's own code into this XCD's L2 (threads 0..NL-1 of every workgroup, one line each)")
    e("s_getpc_b64 s[14:15]")
    e("v_lshlrev_b32 v2, 7, v0")
    e("v_cmp_gt_u32 vcc, CODE_LINES, v0")
    e("s_and_saveexec_b64 s[50:51], vcc")
    e("s_cbranch_execz L_nocpf")
    e("global_load_dword v160, v2, s[14:15]")
    lab("L_nocpf")
    e("s_mov_b64 exec, s[50:51]")
e("v_lshrrev_b32 v1, 6, v0")
e("v_and_b32 v0, 63, v0")
e(f"v_readfirstlane_b32 s{S_W}, v1")
e("s_cmp_ge_u32 s2, 256")
e("s_cbranch_scc1 L_end")
e("s_cmp_ge_u32 s2, 32")
e("s_cbranch_scc1 L_comp")
if True:
    if HSM:
        e(f"s_cmp_gt_u32 s{S_W}, 8")
        e("s_cbranch_scc1 L_end")
        e(f"s_mov_b32 s41, s{S_W}")
    else:
        e(f"s_cmp_lg_u32 s{S_W}, {0 if HELP else 99}")
        e("s_cbranch_scc1 L_end")
    e("s_lshr_b32 s36, s2, 3")
    e("v_lshlrev_b32 v1, 11, v0")
    if MAP == 0:
        e("s_and_b32 s14, s2, 1")
        e("s_bfe_u32 s15, s2, 0x20001")
        e("s_lshl_b32 s37, s14, 4")
        e("s_lshl_b32 s38, s15, 2")
        e("s_add_u32 s37, s37, s38")
        e("s_add_u32 s37, s37, s36")
        e("s_lshl_b32 s37, s37, 17")
        if HS == 1:
            e("v_lshrrev_b32 v2, 5, v0")
            e(f"v_mul_u32_u24 v2, {QROW}, v2")
            e("v_and_b32 v3, 31, v0")
            e("v_lshl_add_u32 v2, v3, 7, v2")
            e("v_cmp_gt_u32 vcc, 28, v3")
        else:
            e("v_lshrrev_b32 v2, 4, v0")
            e(f"v_mul_u32_u24 v2, {QROW}, v2")
            e("v_and_b32 v3, 15, v0")
            e("v_lshl_add_u32 v2, v3, 8, v2")
            e("v_cmp_gt_u32 vcc, 14, v3")
        e("v_mov_b32 v4, 0x7fffffff")
        e("s_lshl_b32 s38, s14, 2")
        e("v_cndmask_b32 v2, v4, v2, vcc")
        e("s_add_u32 s38, s38, s36")
        e("s_lshl_b32 s38, s38, 3")
        e(f"s_add_u32 s38, s38, {64*RB}")
        e(f"s_mul_i32 s38, s38, {QROW}")
        e("s_mul_i32 s39, s15, 3584")
        e("s_add_u32 s38, s38, s39")
        step, last = (2, 58) if HS == 1 else (4, 60)
    else:
        e("s_and_b32 s14, s2, 7")
        e("s_lshl_b32 s37, s14, 2")
        e("s_add_u32 s37, s37, s36")
        e("s_lshl_b32 s37, s37, 17")
        e("v_lshrrev_b32 v2, 4, v0")
        e(f"v_mul_u32_u24 v2, {QROW}, v2")
        e("v_and_b32 v3, 15, v0")
        e("v_lshl_add_u32 v2, v3, 7, v2")
        e("v_cmp_gt_u32 vcc, 14, v3")
        e("v_mov_b32 v4, 0x7fffffff")
        e("s_lshl_b32 s38, s36, 4")
        e("v_cndmask_b32 v2, v4, v2, vcc")
        e(f"s_add_u32 s38, s38, {64*RB}")
        e(f"s_mul_i32 s38, s38, {QROW}")
        e("s_mul_i32 s39, s14, 1792")
        e("s_add_u32 s38, s38, s39")
        step, last = 4, 52
    e("s_waitcnt lgkmcnt(0)")
    srd(SX, 4, M*K*2)
    srd(SQ, 6, K*N*4)
    if HSM:
        e("s_cmp_eq_u32 s41, 0")
        e("s_cbranch_scc1 L_hvec")
        c("waves 1..8: scalar-path touches of x rounds 2..15 (8 rows each, both 64-B halves)")
        e("s_sub_u32 s41, s41, 1")
        e("s_lshl_b32 s41, s41, 14")
        e("s_add_u32 s37, s37, s41")
        e("s_add_u32 s37, s37, 256")
        e("s_mov_b32 s40, 7")
        lab("L_hs")
        for r in range(8):
            for k in range(4):
                e(f"s_buffer_load_dword s42, s[{SX}:{SX+3}], s37 offset:{2048*r + 64*k}")
        e("s_add_u32 s37, s37, 256")
        e("s_sub_u32 s40, s40, 1")
        e("s_cmp_lg_u32 s40, 0")
        e("s_cbranch_scc1 L_hs")
        e("s_endpgm")
        lab("L_hvec")
        e(f"buffer_load_dword v5, v1, s[{SX}:{SX+3}], s37 offen offset:128")
    for r in range(RB):
        e(f"buffer_load_dword v5, v1, s[{SX}:{SX+3}], s37 offen offset:{128*r}")
    e(f"s_add_u32 s37, s37, {128*RB}")
    e(f"s_mov_b32 s40, {16-RB}")
    lab("L_hloop")
    nq = 4 // HS
    for k in range(nq):
        e(f"buffer_load_dword v5, v2, s[{SQ}:{SQ+3}], s38 offen")
        e(f"s_add_u32 s38, s38, {step*QROW if k < nq - 1 else last*QROW}")
    if not (HNOX or HSM): e(f"buffer_load_dword v5, v1, s[{SX}:{SX+3}], s37 offen")
    e("s_add_u32 s37, s37, 128")
    e("s_waitcnt vmcnt(20)")
    e("s_sub_u32 s40, s40, 1")
    e("s_cmp_lg_u32 s40, 0")
    e("s_cbranch_scc1 L_hloop")
    if STAMP:
        e("s_waitcnt vmcnt(0)")
        e("s_memtime s[60:61]")
        e("s_load_dwordx2 s[64:65], s[0:1], 48")
        e("s_waitcnt lgkmcnt(0)")
        e("s_sub_u32 s60, s60, s56")
        e("s_lshl_b32 s66, s2, 2")
        e("s_add_u32 s66, s66, 720000")
        e("v_mov_b32 v1, s66")
        e("v_mov_b32 v2, s60")
        e("global_store_dword v1, v2, s[64:65]")
e("s_endpgm")
lab("L_comp")
e(f"s_sub_u32 s{S_B}, s2, 32")
if MAP == 0:
    e(f"s_lshr_b32 s15, s{S_B}, 3")
    e(f"s_and_b32 s14, s{S_B}, 1")
    e("s_lshl_b32 s14, s14, 2")
    e(f"s_and_b32 s{S_MT}, s15, 3")
    e(f"s_add_u32 s{S_MT}, s{S_MT}, s14")
    e(f"s_bfe_u32 s14, s{S_B}, 0x20001")
    e("s_mul_i32 s14, s14, 7")
    e(f"s_lshr_b32 s{S_NT}, s15, 2")
    e(f"s_add_u32 s{S_NT}, s{S_NT}, s14")
else:
    e(f"s_and_b32 s14, s{S_B}, 7")
    e("s_mul_i32 s14, s14, 28")
    e(f"s_lshr_b32 s15, s{S_B}, 3")
    e("s_add_u32 s14, s14, s15")
    e(f"s_and_b32 s{S_MT}, s14, 7")
    e(f"s_lshr_b32 s{S_NT}, s14, 3")
if STAMP: e(f"s_mov_b32 s63, s{S_W}")
e(f"s_cmp_lt_u32 s{S_W}, 4")
e("s_cbranch_scc1 L_cons")

lab("L_prod")
VQO = 1; VXO = 5; V_W0, V_W1 = 9, 10; V_SA = 11; V_SR = 12; V_S = 14; V_D = 20; RAW = 36; PSV = 100; T = 104
def q(r, t): return RAW + r * 4 + t
e(f"s_sub_u32 s{S_W}, s{S_W}, 4")
e(f"s_lshr_b32 s{S_T1}, s{S_W}, 2")
e(f"s_cmp_lg_u32 s{S_T1}, 0")
e(f"s_setprio {BPRIO}")
e("s_cbranch_scc1 L_noprio")
e("s_setprio 3")
lab("L_noprio")
e(f"v_and_b32 v{T}, 31, v0")
e(f"v_lshrrev_b32 v{T+1}, 5, v0")
e(f"v_mul_u32_u24 v{VQO}, {8*QROW}, v{T+1}")
e(f"v_lshl_add_u32 v{VQO}, v{T}, 4, v{VQO}")
for r in range(1, 4):
    e(f"v_add_u32 v{VQO+r}, {r*QROW}, v{VQO}")
e(f"v_lshlrev_b32 v{V_SA}, 3, v{T}")
e(f"v_lshlrev_b32 v{T+5}, 1, v0")
e(f"s_mul_i32 s{S_QOFF}, s{S_W}, {16*QROW}")
e(f"s_lshl_b32 s{S_T2}, s{S_NT}, 9")
e(f"s_add_u32 s{S_QOFF}, s{S_QOFF}, s{S_T2}")
e(f"s_lshr_b32 s50, s{S_W}, 1")
e(f"s_mul_i32 s51, s50, {OROW}")
e(f"s_lshl_b32 s{S_T2}, s{S_NT}, 8")
e(f"s_add_u32 s51, s51, s{S_T2}")
srd_hi(SQ, K*N*4); srd_hi(SC, 32); srd_hi(SA, 32*N*2); srd_hi(SX, M*K*2)
if NBURST:
    e(f"s_sub_u32 s58, s{S_W}, 4")
    e(f"s_cmp_ge_u32 s58, {NBURST}")
    e("s_cbranch_scc1 L_noburst")
    e("s_setprio 3")
    e(f"v_bfe_u32 v{T+10}, v0, 2, 3")
    e(f"v_lshl_add_u32 v{T+9}, v{T+1}, 6, v{T+10}")
    e(f"v_mul_u32_u24 v{T+9}, {QROW}, v{T+9}")
    e(f"v_and_b32 v{T+10}, 3, v0")
    e(f"v_lshl_add_u32 v{T+9}, v{T+10}, 7, v{T+9}")
    e("s_lshl_b32 s58, s58, 4")
    e(f"s_add_u32 s58, s58, s{S_MT}")
    e("s_add_u32 s58, s58, 8")
    e(f"s_mul_i32 s58, s58, {8*QROW}")
    e(f"s_lshl_b32 s59, s{S_NT}, 9")
    e("s_add_u32 s58, s58, s59")
    e("s_waitcnt lgkmcnt(0)")
    srd_lo(SQ, 6)
    e(f"buffer_load_dword v{T+10}, v{T+9}, s[{SQ}:{SQ+3}], s58 offen")
    e(f"s_setprio {BPRIO}")
    lab("L_noburst")
e("s_waitcnt lgkmcnt(0)")
srd_lo(SC, 8)
if PAIR and TB:
    e(f"s_cmp_eq_u32 s{S_T1}, 0")
    e("s_cbranch_scc1 L_notb0")
    e(f"v_lshrrev_b32 v{T+12}, 2, v0")
    e(f"v_lshlrev_b32 v{T+12}, 1, v{T+12}")
    e(f"s_lshl_b32 s58, s{S_W}, 3")
    e("s_sub_u32 s58, s58, 32")
    e(f"v_mov_b32 v{T+13}, s58")
    e(f"buffer_load_ushort v{T+14}, v{T+12}, s[{SC}:{SC+3}], 0 offen")
    e(f"buffer_load_dwordx2 v[{T+16}:{T+17}], v{T+13}, s[{SC}:{SC+3}], 0 offen")
    lab("L_notb0")
e(f"buffer_load_ushort v{T+6}, v{T+5}, s[{SC}:{SC+3}], 0 offen")
srd_lo(SA, 10)
e(f"buffer_load_dwordx2 v[{V_SR}:{V_SR+1}], v{V_SA}, s[{SA}:{SA+3}], s51 offen")
srd_lo(SQ, 6)
def qload(r):
    b = q(r, 0)
    e(f"buffer_load_dwordx4 v[{b}:{b+3}], v{VQO+(r&3)}, s[{SQ}:{SQ+3}], s{S_QOFF if r < 4 else S_QOF2} offen")
def qloads():
    e(f"s_add_u32 s{S_QOF2}, s{S_QOFF}, {4*QROW}")
    for r in range(8): qload(r)
    e(f"s_add_u32 s{S_QOFF}, s{S_QOFF}, {128*QROW}")
qloads()
if STAMP:
    e(f"v_mov_b32 v{PSV}, 0")
    e(f"v_writelane_b32 v{PSV}, s56, 0")
stamp(1, PSV)
srd_lo(SX, 4)
e(f"s_and_b32 s{S_T0}, s{S_W}, 3")
xvoff(VXO, T + 7)
e(f"s_lshl_b32 s{S_XOFF}, s{S_MT}, 2")
e(f"s_add_u32 s{S_XOFF}, s{S_XOFF}, s{S_T0}")
e(f"s_lshl_b32 s{S_XOFF}, s{S_XOFF}, 17")
e(f"s_lshl_b32 s{S_T2}, s{S_T1}, 7")
e(f"s_sub_u32 s{S_T2}, 256, s{S_T2}")
e(f"s_add_u32 s{S_XOFF}, s{S_XOFF}, s{S_T2}")
e(f"s_lshl_b32 s{S_XM0}, s{S_T0}, 13")
e(f"s_add_u32 s{S_XM0}, s{S_XM0}, {XR}")
e(f"s_lshl_b32 s{S_XSL}, s{S_T1}, 16")
e(f"v_and_b32 v{T+7}, 15, v{T}")
e(f"v_lshrrev_b32 v{T+8}, 4, v{T}")
e(f"v_lshlrev_b32 v{T+8}, 12, v{T+8}")
e(f"v_lshl_add_u32 v{T+8}, v{T+1}, 8, v{T+8}")
e(f"v_lshl_add_u32 v{T+8}, v{T+7}, 4, v{T+8}")
e(f"s_lshl_b32 s{S_T2}, s50, 13")
e(f"s_and_b32 s58, s{S_W}, 1")
e("s_lshl_b32 s58, s58, 9")
e(f"s_add_u32 s{S_T2}, s{S_T2}, s58")
e(f"s_add_u32 s{S_T2}, s{S_T2}, {WR}")
e(f"v_add_u32 v{V_W0}, s{S_T2}, v{T+8}")
e(f"s_lshl_b32 s50, s50, 8")
e(f"s_add_u32 s50, s50, {SCL + 1024}")
e(f"v_add_u32 v{V_SA}, s50, v{V_SA}")
if PAIR:
    e(f"v_and_b32 v18, 7, v0")
    e(f"v_lshlrev_b32 v18, 3, v18")
    e(f"v_add_u32 v18, {PT}, v18")
def xload(d):
    if d == 0:
        e(f"s_add_u32 m0, s{S_XM0}, s{S_XSL}")
        e(f"s_add_u32 s{S_XOF2}, s{S_XOFF}, 65536")
        e(f"s_sub_u32 s{S_XSL}, s{S_XSL}, 32768")
        e(f"s_cselect_b32 s{S_XSL}, {2*32768}, s{S_XSL}")
    if d == 4:
        e("s_add_u32 m0, m0, 4096")
        e(f"s_add_u32 s{S_XOFF}, s{S_XOFF}, 256")
    e(f"buffer_load_dwordx4 v{VXO+(d&3)}, s[{SX}:{SX+3}], s{S_XOFF if d < 4 else S_XOF2} offen offset:{1024*(d&3)} lds")
def wwrite(t):
    if not NOWR:
        e(f"ds_write_b128 v{V_W0}, v[{V_D+4*t}:{V_D+4*t+3}] offset:{1024*t}")
def SL(extra):
    RPB = SB // 4
    for r0 in range(0, 8, RPB):
        rows = range(r0, r0 + RPB)
        e(f"s_waitcnt vmcnt({8 - (r0 + RPB) + extra})")
        if SALT:
            for r in rows:
                for t in range(4):
                    e(f"v_lshlrev_b32 v{q(r,t)}, 2, v{q(r,t)}")
                    k = r * 4 + t - SALT
                    if k >= 0: e(f"ds_read_b32 v{RAW+k}, v{RAW+k} offset:{TBL}")
        else:
            for r in rows:
                for t in range(4): e(f"v_lshlrev_b32 v{q(r,t)}, 2, v{q(r,t)}")
            for r in rows:
                for t in range(4): e(f"ds_read_b32 v{q(r,t)}, v{q(r,t)} offset:{TBL}")
    if SALT:
        for k in range(32 - SALT, 32): e(f"ds_read_b32 v{RAW+k}, v{RAW+k} offset:{TBL}")
V_PB = 18
def SLP():
    for sp in range(4):
        e(f"s_waitcnt vmcnt({6 - 2*sp})")
        for r in (2*sp, 2*sp+1):
            for t in (0, 2): e(f"v_lshl_add_u32 v{q(r,t)}, v{q(r,t)}, 6, v{V_PB}")
        for r in (2*sp, 2*sp+1):
            for t in (0, 2): e(f"v_lshl_add_u32 v{q(r,t)}, v{q(r,t+1)}, 10, v{q(r,t)}")
        for r in (2*sp, 2*sp+1):
            for t in (0, 2): e(f"ds_read_b64 v[{q(r,t)}:{q(r,t)+1}], v{q(r,t)}")
ops = []
ops.append(f"v_lshlrev_b32 v{V_S}, 16, v{V_SR}")
ops.append(f"v_and_b32 v{V_S+1}, 0xffff0000, v{V_SR}")
ops.append(f"v_lshlrev_b32 v{V_S+2}, 16, v{V_SR+1}")
ops.append(f"v_and_b32 v{V_S+3}, 0xffff0000, v{V_SR+1}")
for sp in range(4):
    for r in (2*sp, 2*sp+1):
        for t in range(4): ops.append(f"v_mul_f32 v{q(r,t)}, v{V_S+t}, v{q(r,t)}")
    for t in range(4): ops.append(f"v_cvt_pk_bf16_f32 v{V_D+4*t+sp}, v{q(2*sp,t)}, v{q(2*sp+1,t)}")
def MC1():
    if MCD:
        e(f"s_waitcnt lgkmcnt({4 if PAIR else 8})")
        for k, o in enumerate(ops[:MCD]):
            if k == 40: e("s_waitcnt lgkmcnt(0)")
            e(o)
if BMODE == 1:
    e(f"s_mov_b32 s{S_RND}, 3")
    e(f"s_cmp_lg_u32 s{S_T1}, 0")
    e("s_cbranch_scc1 L_pB")
c("start-up: codebook table, first unit straight through")
e("s_waitcnt vmcnt(9)")
e(f"v_lshlrev_b32 v{T+6}, 16, v{T+6}")
e(f"v_lshlrev_b32 v{T+5}, 2, v0")
e(f"ds_write_b32 v{T+5}, v{T+6} offset:{TBL}")
if PAIR and TB:
    c("group B: pair table, entry (qa + 16 qb) -> (cb[qa], cb[qb]) as f32, 8 replicas; wave a writes qb = 4a..4a+3")
    e(f"s_cmp_eq_u32 s{S_T1}, 0")
    e("s_cbranch_scc1 L_notb1")
    e(f"s_lshl_b32 s58, s{S_T0}, 12")
    e(f"s_add_u32 s58, s58, {PT}")
    e(f"v_lshl_add_u32 v{T+12}, v0, 4, s58")
    e(f"v_lshlrev_b32 v{T+20}, 16, v{T+14}")
    e(f"v_mov_b32 v{T+22}, v{T+20}")
    for k in range(4):
        src = T + 16 + (k >> 1)
        if k & 1: e(f"v_and_b32 v{T+21}, 0xffff0000, v{src}")
        else: e(f"v_lshlrev_b32 v{T+21}, 16, v{src}")
        e(f"v_mov_b32 v{T+23}, v{T+21}")
        e(f"ds_write_b128 v{T+12}, v[{T+20}:{T+23}] offset:{1024*k}")
        e("s_nop 1")
    lab("L_notb1")
SL(0)
e("s_waitcnt lgkmcnt(0)")
if BMODE == 2:
    e(f"s_mov_b32 s{S_RND}, 3")
    e(f"s_cmp_lg_u32 s{S_T1}, 0")
    e("s_cbranch_scc1 L_pB")
for o in ops: e(o)
for t in range(4): wwrite(t)
e("s_setprio 0")
if BMODE == 0:
    e(f"s_mov_b32 s{S_RND}, 3")
    e(f"s_cmp_lg_u32 s{S_T1}, 0")
    e("s_cbranch_scc1 L_pB")
if Q2B4: qloads()
e("s_waitcnt lgkmcnt(0)")
stamp(2, PSV)
e("s_barrier")
if not Q2B4: qloads()
e("s_branch L_pD")
lab("L_pB")
if BMODE == 0:
    stamp(2, PSV)
    e("s_barrier")
    stamp(3, PSV, dyn=S_RND)
    for d in range(8): xload(d)
    qloads()
    e("s_waitcnt vmcnt(8)")
    e("s_branch L_Wdone")
elif BMODE == 2:
    e("s_setprio 0")
    for o in ops[:BMC]: e(o)
    stamp(2, PSV)
    e("s_barrier")
    for d in range(XD): xload(d)
    for o in ops[BMC:MCD]: e(o)
else:
    e("s_setprio 0")
    for d in range(XB): xload(d)
    stamp(2, PSV)
    e("s_barrier")
    stamp(3, PSV, dyn=S_RND)
    for d in range(XB, 8): xload(d)
    e(f"s_setprio {DPRIO}")
    SL(8)
    MC1()
    e("s_setprio 0")
    e("s_branch L_pL2")
if AL: L.append(f".p2align {AL}")
lab("L_pL")
c("L phase (S_RND = epoch+3)")
stamp(3, PSV, dyn=S_RND)
for d in range(XD, 8): xload(d)
lab("L_pL2")
e("s_waitcnt lgkmcnt(0)")
if QSKIP:
    assert QINT == 0 and WMID == 8
    for o in ops[MCD:]: e(o)
    e(f"s_cmp_gt_u32 s{S_RND}, 15")
    e("s_cbranch_scc0 L_doQ")
    e("s_waitcnt vmcnt(0)")
    e("s_branch L_doW")
    lab("L_doQ")
else:
    e(f"s_cmp_gt_u32 s{S_RND}, 15")
    e(f"s_cselect_b32 s{SQ+2}, 0, s{SQ+2}")
e(f"s_add_u32 s{S_QOF2}, s{S_QOFF}, {4*QROW}")
pos = len(ops) if QSKIP else MCD
if LPRIO: e(f"s_setprio {LPRIO}")
for r in range(8):
    need = max(4 + 12 * (r // 2 + 1), min(len(ops), QINT)) if QINT else len(ops)
    while pos < need:
        e(ops[pos]); pos += 1
    if r == WMID:
        while pos < len(ops):
            e(ops[pos]); pos += 1
        e(f"s_waitcnt vmcnt({WMID})")
        for t in range(4): wwrite(t)
    qload(r)
e(f"s_add_u32 s{S_QOFF}, s{S_QOFF}, {128*QROW}")
if WMID >= 8:
    e("s_waitcnt vmcnt(8)")
    lab("L_doW")
    for t in range(4): wwrite(t)
if LPRIO: e("s_setprio 0")
lab("L_Wdone")
e("s_waitcnt lgkmcnt(0)")
stamp(23, PSV, dyn=S_RND)
e(f"s_add_u32 s{S_RND}, s{S_RND}, 1")
e(f"s_cmp_ge_u32 s{S_RND}, 17")
e("s_barrier")
e("s_cbranch_scc1 L_pend")
lab("L_pD")
c("D phase: shift + lookup")
stamp(3, PSV, dyn=S_RND)
e(f"s_setprio {DPRIO}")
e(f"ds_read_b64 v[{V_SR}:{V_SR+1}], v{V_SA}")
e(f"v_add_u32 v{V_SA}, 1024, v{V_SA}")
if PAIR: SLP()
else: SL(0)
MC1()
e("s_setprio 0")
for d in range(XD): xload(d)
stamp(23, PSV, dyn=S_RND)
e(f"s_add_u32 s{S_RND}, s{S_RND}, 1")
e("s_barrier")
e("s_branch L_pL")
lab("L_pend")
stamp_out(PSV, 1)
e("s_endpgm")

ACC = 8
XF = ACC + 128
WF = XF + 16
V_XB, V_XA, V_WB, V_XL, V_WL, V_O = 1, 2, 3, 4, 5, 6
def acc(i, j): b = ACC + (i * 2 + j) * 16; return f"v[{b}:{b+15}]"
def xf(i): b = XF + 4 * i; return f"v[{b}:{b+3}]"
def wf(bu, j): b = WF + 8 * bu + 4 * j; return f"v[{b}:{b+3}]"
lab("L_cons")
e(f"s_setprio {X0PRIO}")
c("X(0) and the scale table are loaded by the (still idle) consumers")
xvoff(XF, XF + 4)
e(f"s_lshl_b32 s{S_XOFF}, s{S_MT}, 2")
e(f"s_add_u32 s{S_XOFF}, s{S_XOFF}, s{S_W}")
e(f"s_lshl_b32 s{S_XOFF}, s{S_XOFF}, 17")
e(f"s_add_u32 s{S_XOF2}, s{S_XOFF}, 65536")
e(f"s_lshl_b32 s{S_T2}, s{S_W}, 11")
e(f"s_add_u32 m0, s{S_T2}, {SCL}")
srd_hi(SX, M*K*2)
srd_hi(SA, 32*N*2)
e(f"v_lshrrev_b32 v{XF+6}, 4, v0")
e(f"v_mul_u32_u24 v{XF+6}, {OROW}, v{XF+6}")
e(f"v_and_b32 v{XF+7}, 15, v0")
e(f"v_lshl_add_u32 v{XF+6}, v{XF+7}, 4, v{XF+6}")
e(f"v_add_u32 v{XF+7}, {4*OROW - 1024}, v{XF+6}")
e(f"s_mul_i32 s51, s{S_W}, {8*OROW}")
e(f"s_lshl_b32 s{S_T2}, s{S_NT}, 8")
e(f"s_add_u32 s51, s51, s{S_T2}")
e("s_waitcnt lgkmcnt(0)")
srd_lo(SA, 10)
e("s_setprio 3")
if PAIR and not TB:
    srd(SC, 8, 32)
    e(f"v_lshrrev_b32 v{WF}, 2, v0")
    e(f"v_lshlrev_b32 v{WF}, 1, v{WF}")
    e(f"s_lshl_b32 s58, s{S_W}, 3")
    e(f"v_mov_b32 v{WF+1}, s58")
    e(f"buffer_load_ushort v{WF+2}, v{WF}, s[{SC}:{SC+3}], 0 offen")
    e(f"buffer_load_dwordx2 v[{WF+4}:{WF+5}], v{WF+1}, s[{SC}:{SC+3}], 0 offen")
e(f"buffer_load_dwordx4 v{XF+6}, s[{SA}:{SA+3}], s51 offen lds")
e(f"buffer_load_dwordx4 v{XF+7}, s[{SA}:{SA+3}], s51 offen offset:1024 lds")
e(f"s_setprio {X0PRIO}")
if PAIR and not TB:
    c("pair table: entry (qa + 16 qb) -> (cb[qa], cb[qb]) as f32, 8 replicas; this wave writes qb = 4w..4w+3")
    e(f"s_lshl_b32 s58, s{S_W}, 12")
    e(f"s_add_u32 s58, s58, {PT}")
    e(f"v_lshl_add_u32 v{WF}, v0, 4, s58")
    e("s_waitcnt vmcnt(2)")
    e(f"v_lshlrev_b32 v{WF+8}, 16, v{WF+2}")
    e(f"v_mov_b32 v{WF+10}, v{WF+8}")
    for k in range(4):
        src = WF + 4 + (k >> 1)
        if k & 1: e(f"v_and_b32 v{WF+9}, 0xffff0000, v{src}")
        else: e(f"v_lshlrev_b32 v{WF+9}, 16, v{src}")
        e(f"v_mov_b32 v{WF+11}, v{WF+9}")
        e(f"ds_write_b128 v{WF}, v[{WF+8}:{WF+11}] offset:{1024*k}")
        e("s_nop 1")
e(f"s_lshl_b32 s{S_T2}, s{S_W}, 13")
e(f"s_add_u32 m0, s{S_T2}, {XR + 32768}")
srd_lo(SX, 4)
for d in range(8):
    if d == 4: e("s_add_u32 m0, m0, 4096"); e("s_nop 0")
    e(f"buffer_load_dwordx4 v{XF+(d&3)}, s[{SX}:{SX+3}], s{S_XOFF if d < 4 else S_XOF2} offen offset:{1024*(d&3)} lds")
e("s_setprio 0")
if STAMP:
    e(f"v_mov_b32 v{SV}, 0")
    e(f"v_writelane_b32 v{SV}, s56, 0")
e(f"s_lshr_b32 s{S_T0}, s{S_W}, 1")
e(f"s_and_b32 s{S_T1}, s{S_W}, 1")
e("v_and_b32 v8, 15, v0")
e("v_lshrrev_b32 v9, 4, v0")
e("v_lshrrev_b32 v10, 1, v8")
e("v_xor_b32 v10, v10, v9")
e("v_lshlrev_b32 v10, 4, v10")
e(f"v_lshl_add_u32 v{V_XL}, v8, 7, v10")
e(f"s_lshl_b32 s{S_T2}, s{S_T0}, 14")
e(f"s_add_u32 s{S_T2}, s{S_T2}, {XR}")
e(f"v_add_u32 v{V_XL}, s{S_T2}, v{V_XL}")
e(f"s_lshl_b32 s{S_T2}, s{S_T1}, 12")
e(f"s_add_u32 s{S_T2}, s{S_T2}, {WR}")
e(f"v_lshl_add_u32 v{V_WL}, v0, 4, s{S_T2}")
e(f"v_mul_u32_u24 v{V_O}, {4*OROW}, v9")
e(f"v_lshl_add_u32 v{V_O}, v8, 3, v{V_O}")
e(f"s_lshl_b32 s{S_O}, s{S_MT}, 1")
e(f"s_add_u32 s{S_O}, s{S_O}, s{S_T0}")
e(f"s_mul_i32 s{S_O}, s{S_O}, {128*OROW}")
e(f"s_lshl_b32 s{S_T2}, s{S_NT}, 1")
e(f"s_add_u32 s{S_T2}, s{S_T2}, s{S_T1}")
e(f"s_lshl_b32 s{S_T2}, s{S_T2}, 7")
e(f"s_add_u32 s{S_O}, s{S_O}, s{S_T2}")
e(f"v_add_u32 v{V_XB}, 32768, v{V_XL}")
e(f"v_xor_b32 v{V_XA}, 64, v{V_XB}")
e(f"v_mov_b32 v{V_WB}, v{V_WL}")
for r in range(128): e(f"v_mov_b32 v{ACC+r}, 0")
e(f"s_mov_b32 s{S_RND}, 0")
e(f"s_mov_b32 s{S_XSL}, 32768")
e(f"s_mov_b32 s{S_WSL}, 0")
srd(SO, 12, M*N*2)
e(f"s_setprio {CPRIO}")
e("s_waitcnt vmcnt(0) lgkmcnt(0)")
stamp(1, SV)
e("s_barrier")
stamp(2, SV)
def acc16(i, j): b = ACC + (i * 4 + j) * 4; return f"v[{b}:{b+3}]"
def xq(i): b = XF + 4 * (i & 3); return f"v[{b}:{b+3}]"
def wq(j): b = WF + 4 * j; return f"v[{b}:{b+3}]"
def rX(i, s): e(f"ds_read_b128 {xq(i)}, v{V_XA if s else V_XB} offset:{i*2048}")
def rW(j, s): e(f"ds_read_b128 {wq(j)}, v{V_WB} offset:{s*8192 + j*1024}")
def mf(i, j): e(f"v_mfma_f32_16x16x32_bf16 {acc16(i,j)}, {xq(i)}, {wq(j)}, {acc16(i,j)}")
rX(0, 0); rX(1, 0)
for j in range(4): rW(j, 0)
if AL: L.append(f".p2align {AL}")
lab("L_cloop")
for s in range(2):
    for p in range(4):
        c(f"k32 step {s} pair {p}")
        i0, i1 = 2 * p, 2 * p + 1
        if p == 0:
            e("s_waitcnt lgkmcnt(3)")
            mf(i0, 0); rX(2, s); mf(i1, 0); rX(3, s)
            e("s_waitcnt lgkmcnt(4)")
            mf(i0, 1); mf(i1, 1)
            e("s_waitcnt lgkmcnt(3)")
            mf(i0, 2); mf(i1, 2)
            e("s_waitcnt lgkmcnt(2)")
            mf(i0, 3); mf(i1, 3)
        elif p < 3:
            e("s_waitcnt lgkmcnt(1)")
            mf(i0, 0);
            rX(i0 + 2, s)
            e("s_waitcnt lgkmcnt(1)")
            mf(i1, 0); rX(i1 + 2, s)
            mf(i0, 1); mf(i1, 1)
            if s == 1 and p == 1:
                e(f"s_add_u32 s{S_XSL}, s{S_XSL}, 32768")
                e(f"s_cmp_eq_u32 s{S_XSL}, {3*32768}")
            mf(i0, 2)
            if s == 1 and p == 1:
                e(f"s_cselect_b32 s{S_XSL}, 0, s{S_XSL}")
                e(f"s_xor_b32 s{S_WSL}, s{S_WSL}, 16384")
            if s == 1 and p == 2:
                e(f"v_add_u32 v{V_XB}, s{S_XSL}, v{V_XL}")
                e(f"v_add_u32 v{V_WB}, s{S_WSL}, v{V_WL}")
            mf(i1, 2)
            if s == 1 and p == 2:
                e(f"v_xor_b32 v{V_XA}, 64, v{V_XB}")
                e(f"s_add_u32 s{S_RND}, s{S_RND}, 1")
            mf(i0, 3); mf(i1, 3)
        else:
            ns = s ^ 1
            e("s_waitcnt lgkmcnt(0)")
            if s == 1:
                stamp(3, SV, dyn=S_RND)
                e("s_barrier")
                stamp(23, SV, dyn=S_RND)
            rX(0, ns)
            mf(i0, 0); rX(1, ns); mf(i1, 0); rW(0, ns)
            mf(i0, 1); mf(i1, 1); rW(1, ns)
            if s == 1: e(f"s_cmp_lg_u32 s{S_RND}, {16 - EARLY}")
            mf(i0, 2); mf(i1, 2); rW(2, ns)
            mf(i0, 3); mf(i1, 3); rW(3, ns)
e("s_cbranch_scc1 L_cloop")
if not EARLY:
    c("epilogue")
    e("s_nop 7")
    stamp(20, SV)
    e("s_waitcnt lgkmcnt(0)")
    for t in range(1, 4):
        e(f"v_add_u32 v{XF+t}, {t*OROW}, v{V_O}")
    e(f"v_mov_b32 v{XF}, v{V_O}")
    for i in range(8):
        for r in range(4):
            a = lambda j: ACC + (i * 4 + j) * 4 + r
            d = WF + 2 * r + 8 * (i & 1)
            e(f"v_cvt_pk_bf16_f32 v{d}, v{a(0)}, v{a(1)}")
            e(f"v_cvt_pk_bf16_f32 v{d+1}, v{a(2)}, v{a(3)}")
        for r in range(4):
            d = WF + 2 * r + 8 * (i & 1)
            e(f"buffer_store_dwordx2 v[{d}:{d+1}], v{XF+r}, s[{SO}:{SO+3}], s{S_O} offen {STFLAG}")
        e(f"s_add_u32 s{S_O}, s{S_O}, {16*OROW}")
else:
    c("last round, pair-outer: finished row blocks are converted and stored under the remaining MFMAs")
    stamp(20, SV)
    def out_ops(i):
        base = ACC + i * 16
        A = lambda j, r: base + 4 * j + r
        res = []
        for r in range(4):
            d = (4 if i == 0 else base - 16 + 12) if r == 0 else base + 4 * (r - 1)
            res.append([f"v_cvt_pk_bf16_f32 v{d}, v{A(0,r)}, v{A(1,r)}",
                        f"v_cvt_pk_bf16_f32 v{d+1}, v{A(2,r)}, v{A(3,r)}",
                        f"buffer_store_dwordx2 v[{d}:{d+1}], v{V_O}, s[{SO}:{SO+3}], s{S_O} offen {STFLAG}",
                        f"s_add_u32 s{S_O}, s{S_O}, {OROW if r < 3 else 13*OROW}"])
        return res
    pend = []
    def xq2(g, k): b = XF + 8 * (g & 1) + 4 * k; return f"v[{b}:{b+3}]"
    ORD = {
      0: "000 001 100 101 | 010 011 110 111 200 201 210 211 300 301 310 311",
      1: "000 100 001 101 | 010 011 110 111 200 201 210 211 300 301 310 311",
      2: "000 100 001 101 | 011 010 110 111 211 210 200 201 301 300 310 311",
      3: "000 100 200 001 101 201 | 011 010 110 111 211 210 310 311 301 300",
      4: "000 100 200 300 001 101 | 011 010 110 111 211 210 201 301 311 310",
      5: "000 100 001 101 201 200 | 010 011 111 110 210 211 311 310 300 301",
    }[TORD].split()
    BARG = ORD.index("|") - 1
    G = [tuple(int(ch) for ch in t) for t in ORD if t != "|"]
    assert sorted(G) == sorted((p, r_, s_) for p in range(4) for r_ in range(2) for s_ in range(2)) and G[0] == (0, 0, 0)
    outq = ["X0", "X1", "W0", "W1", "W2", "W3"]
    def need(*tags):
        idx = max((outq.index(t) for t in tags if t in outq), default=-1)
        if idx >= 0:
            e(f"s_waitcnt lgkmcnt({len(outq) - idx - 1})")
            del outq[:idx + 1]
    done = {p: 0 for p in range(4)}
    fresh = False
    for g, (p, rr, sg) in enumerate(G):
        last = g == len(G) - 1
        if not last: np_, nr, ns = G[g + 1]
        neww = (not last) and (nr, ns) != (rr, sg)
        if g == BARG:
            e("s_barrier")
        for j in range(4):
            for k in range(2):
                need(f"X{k}", f"W{j}")
                e(f"v_mfma_f32_16x16x32_bf16 {acc16(2*p+k,j)}, {xq2(g,k)}, {wq(j)}, {acc16(2*p+k,j)}")
                if j == 0 and not last:
                    e(f"ds_read_b128 {xq2(g+1,k)}, v{V_XA if ns else V_XB} offset:{(2*np_+k)*2048 + 32768*nr}")
                    outq.append(f"n{k}")
            if neww:
                e(f"ds_read_b128 {wq(j)}, v{V_WB} offset:{ns*8192 + j*1024 + 16384*nr}")
                outq.append(f"m{j}")
            if pend and not (fresh and j == 0) and (SDENS == 1 or j % 2 == 1 or len(pend) > 8):
                for o in pend.pop(0): e(o)
        outq[:] = [t.replace("n", "X").replace("m", "W") for t in outq]
        fresh = False
        done[p] += 1
        if done[p] == 4:
            pend += out_ops(2 * p) + out_ops(2 * p + 1); fresh = True
    e("s_nop 7")
    for grp_ in pend:
        for o in grp_: e(o)
stamp(21, SV)
if STAMP: e("s_waitcnt vmcnt(0)")
stamp(22, SV)
if STAMP:
    e("s_memrealtime s[60:61]")
    e("s_waitcnt lgkmcnt(0)")
    e(f"v_writelane_b32 v{SV}, s60, 61")
    e(f"v_writelane_b32 v{SV}, s54, 60")
stamp_out(SV, 1)
e("s_endpgm")

lab("L_end")
e("s_endpgm")
tail = f""".section .rodata,"a"
.p2align 6
.amdhsa_kernel {NAME}
  .amdhsa_next_free_vgpr 168
  .amdhsa_next_free_sgpr 80
  .amdhsa_accum_offset 168
  .amdhsa_group_segment_fixed_size 0
  .amdhsa_kernarg_size 56
  .amdhsa_user_sgpr_count 2
  .amdhsa_user_sgpr_kernarg_segment_ptr 1
  .amdhsa_system_sgpr_workgroup_id_x 1
  .amdhsa_float_denorm_mode_32 3
.end_amdhsa_kernel
"""
body = "\n".join(x for x in L if x) + "\n"
body = body.replace("CODE_LINES", str(int(OPT.get("cl", 44))))
open(sys.argv[1], "w").write(hdr + body + tail)
print("LDS", LDS)
```
